```python
import torch

def _softmax(x, axis=-1):
    return torch.softmax(x, dim=axis)
def _gelu(x):
    return torch.nn.functional.gelu(x, approximate="tanh")
def _silu(x):
    return torch.nn.functional.silu(x)
def _sigmoid(x):
    return torch.sigmoid(x)
def _layernorm(x, axis=-1, eps=1e-5):
    m = x.mean(dim=axis, keepdim=True)
    v = x.var(dim=axis, keepdim=True, unbiased=False)
    return (x - m) / torch.sqrt(v + eps)
def _scatter_add(tgt, idx, src, axis=0):
    return tgt.clone().index_add_(axis, idx, src)
def _segment_sum(src, seg, n):
    out = torch.zeros((n,) + src.shape[1:], dtype=src.dtype)
    return out.index_add_(0, seg, src)
def _pad(x, pw):
    flat = tuple(v for pair in reversed(pw) for v in pair)
    return torch.nn.functional.pad(x, flat)

kernel_name = 'recurrent_scan__ssm_conv_s5__dense_activation_gelu__prompt'

def setup_inputs():

    _w = (lambda a: (lambda t: t.to(torch.bfloat16) if t.is_floating_point() else t)(torch.as_tensor(a)))
    def _A_setup():
        B, S, D = 1, 2048, 640
        P = D
        Lambda_re = -0.5 * (lambda _x: torch.exp(torch.as_tensor(_x)))((lambda *s: torch.randn(*s, dtype=torch.bfloat16) * 0.4)(P))
        Lambda_im = (lambda *s: torch.randn(*s, dtype=torch.bfloat16) * 0.4)(P) * 1.0
        B_re = (lambda *s: torch.randn(*s, dtype=torch.bfloat16) * 0.4)(P, D) * (D ** -0.5)
        B_im = (lambda *s: torch.randn(*s, dtype=torch.bfloat16) * 0.4)(P, D) * (D ** -0.5)
        C_re = (lambda *s: torch.randn(*s, dtype=torch.bfloat16) * 0.4)(D, P) * (P ** -0.5)
        C_im = (lambda *s: torch.randn(*s, dtype=torch.bfloat16) * 0.4)(D, P) * (P ** -0.5)
        log_dt = (lambda *s: torch.randn(*s, dtype=torch.bfloat16) * 0.4)(P) * 0.3 - 2.0
        Dskip = (lambda *s: torch.randn(*s, dtype=torch.bfloat16) * 0.2)(D)
        return {
            "x": _w((lambda *s: torch.randn(*s, dtype=torch.bfloat16) * 0.05)(B, S, D)),
            "Lambda_re": _w(Lambda_re),
            "Lambda_im": _w(Lambda_im),
            "B_re": _w(B_re),
            "B_im": _w(B_im),
            "C_re": _w(C_re),
            "C_im": _w(C_im),
            "log_dt": _w(log_dt),
            "Dskip": _w(Dskip),
        }
    _A_in = _A_setup()

    def _B_setup():
        B, S, D, F = 1, 2048, 640, 1728
        return {
            "x": _w((lambda *s: torch.randn(*s, dtype=torch.bfloat16) * 0.05)(B, S, D)),
            "w1": _w((lambda *s: torch.randn(*s, dtype=torch.bfloat16) * 0.8)(D, F) * (D ** -0.5)),
            "b1": _w((lambda *s: torch.randn(*s, dtype=torch.bfloat16) * 12.8)(F) * 0.01),
            "w2": _w((lambda *s: torch.randn(*s, dtype=torch.bfloat16) * 0.8)(F, D) * (F ** -0.5)),
            "b2": _w((lambda *s: torch.randn(*s, dtype=torch.bfloat16) * 12.8)(D) * 0.01),
        }
    _B_in = _B_setup()

    return {
        "A_x": _A_in["x"],
        "A_Lambda_re": _A_in["Lambda_re"],
        "A_Lambda_im": _A_in["Lambda_im"],
        "A_B_re": _A_in["B_re"],
        "A_B_im": _A_in["B_im"],
        "A_C_re": _A_in["C_re"],
        "A_C_im": _A_in["C_im"],
        "A_log_dt": _A_in["log_dt"],
        "A_Dskip": _A_in["Dskip"],
        "B_x": _B_in["x"],
        "B_w1": _B_in["w1"],
        "B_b1": _B_in["b1"],
        "B_w2": _B_in["w2"],
        "B_b2": _B_in["b2"],
    }

def reference(A_x, A_Lambda_re, A_Lambda_im, A_B_re, A_B_im, A_C_re, A_C_im, A_log_dt, A_Dskip, B_x, B_w1, B_b1, B_w2, B_b2):
    def _A_ref(x, Lambda_re, Lambda_im, B_re, B_im, C_re, C_im, log_dt, Dskip):
        Bsz, L, H = x.shape
        Lam = Lambda_re + 1j * Lambda_im
        Bmat = B_re + 1j * B_im
        Cmat = C_re + 1j * C_im
        dt = torch.exp(log_dt)
        Lam_bar = torch.exp(dt * Lam)
        B_bar = ((Lam_bar - 1.0) / Lam)[:, None] * Bmat
        Bu = torch.einsum("bld,pd->blp", x + 0j, B_bar)
        h = torch.zeros_like(Bu[:, 0, :])
        hs = []
        for t in range(L):
            h = Lam_bar[None, :] * h + Bu[:, t, :]
            hs.append(h)
        hseq = torch.stack(hs, 1)
        y = 2.0 * torch.einsum("blp,dp->bld", hseq, Cmat).real + x * Dskip[None, None, :]
        return y

    def _B_ref(x, w1, b1, w2, b2):
        h = torch.einsum("bsd,df->bsf", x, w1) + b1
        h = _gelu(h)
        return torch.einsum("bsf,fd->bsd", h, w2) + b2

    x = A_x
    xn = _layernorm(x, axis=-1)
    s = _A_ref(xn, A_Lambda_re, A_Lambda_im, A_B_re, A_B_im, A_C_re, A_C_im, A_log_dt, A_Dskip)
    g = _silu(_B_ref(xn, B_w1, B_b1, B_w2, B_b2))
    return x + s * g
```

```python
import re

TRANS = ("v_exp_f32", "v_log_f32", "v_rcp_f32", "v_rsq_f32", "v_sqrt_f32", "v_sin_f32", "v_cos_f32")

_reg_re = re.compile(r"^(-|\|)?(abs\()?([vas])(\d+)\)?\|?$")
_rng_re = re.compile(r"^(-)?([vas])\[(\d+):(\d+)\]$")


def regs_of(tok):
    tok = tok.strip()
    m = _rng_re.match(tok)
    if m:
        return [(m.group(2), i) for i in range(int(m.group(3)), int(m.group(4)) + 1)]
    m = _reg_re.match(tok)
    if m:
        return [(m.group(3), int(m.group(4)))]
    if tok in ("vcc", "vcc_lo", "vcc_hi"):
        return [("s", "vcc")]
    if tok in ("exec", "exec_lo", "exec_hi"):
        return [("s", "exec")]
    if tok == "m0":
        return [("s", "m0")]
    return []


def split_ops(s):
    out, depth, cur = [], 0, ""
    for ch in s:
        if ch in "[(":
            depth += 1
        if ch in "])":
            depth -= 1
        if ch == "," and depth == 0:
            out.append(cur.strip())
            cur = ""
        else:
            cur += ch
    if cur.strip():
        out.append(cur.strip())
    return out


class Ins:
    __slots__ = ("text", "mn", "kind", "defs", "uses", "srcc", "passes", "wide_data", "targets", "extra", "dpp", "opsel_dst")

    def __init__(self, text):
        self.text = text.strip()
        self.defs, self.uses = set(), set()
        self.srcc = set()
        self.passes = 0
        self.wide_data = set()
        self.targets = None
        self.extra = None
        self.dpp = False
        self.opsel_dst = False
        self.parse()

    def parse(self):
        t = self.text.split(";")[0].strip()
        if t.endswith(":"):
            self.mn, self.kind = t, "label"
            return
        if t.startswith("."):
            self.mn, self.kind = t, "directive"
            return
        parts = t.split(None, 1)
        mn = parts[0]
        self.mn = mn
        rest = parts[1] if len(parts) > 1 else ""
        ops = split_ops(rest)
        mods = ""
        if ops:
            last = ops[-1].split(None, 1)
            ops[-1] = last[0]
            mods = last[1] if len(last) > 1 else ""
        R = [regs_of(o) for o in ops]
        base = re.sub(r"_(e32|e64|dpp|sdwa)$", "", mn)
        if mn.startswith("v_mfma"):
            self.kind = "mfma"
            self.defs = set(R[0])
            self.uses = set(R[1]) | set(R[2]) | set(R[3])
            self.srcc = set(R[3])
            if "16x16x32" in mn:
                self.passes = 4
            elif "32x32x16" in mn:
                self.passes = 8
            elif "16x16x4_f32" in mn:
                self.passes = 8
            else:
                raise ValueError(mn)
        elif mn.startswith("v_"):
            self.kind = "trans" if base in TRANS else "valu"
            self.defs = set(R[0])
            for r in R[1:]:
                self.uses |= set(r)
            if base.startswith("v_permlane") and "swap" in base:
                self.defs |= set(R[1])
                self.uses |= set(R[0])
            if base in ("v_fmac_f32", "v_writelane_b32"):
                self.uses |= set(R[0])
            if base in ("v_add_co_u32", "v_addc_co_u32", "v_sub_co_u32"):
                self.defs |= set(R[1])
            if mn.endswith("_dpp"):
                self.dpp = True
                self.uses |= set(R[0])
            if base == "v_cndmask_b32" and len(ops) == 3:
                self.uses.add(("s", "vcc"))
            if "dst_sel" in mods:
                self.opsel_dst = True
                self.uses |= set(R[0])
        elif mn.startswith("ds_read") or mn.startswith("ds_bpermute") or mn.startswith("ds_swizzle"):
            self.kind = "ds"
            self.defs = set(R[0])
            for r in R[1:]:
                self.uses |= set(r)
        elif mn.startswith("ds_write") or mn.startswith("ds_add"):
            self.kind = "ds"
            for r in R:
                self.uses |= set(r)
        elif mn.startswith("buffer_load"):
            if re.search(r"\blds\b", mods):
                self.kind = "dma"
                for r in R:
                    self.uses |= set(r)
                self.uses.add(("s", "m0"))
            else:
                self.kind = "vload"
                self.defs = set(R[0])
                for r in R[1:]:
                    self.uses |= set(r)
        elif mn.startswith("buffer_store"):
            self.kind = "vstore"
            for r in R:
                self.uses |= set(r)
            if "x4" in mn or "x3" in mn:
                self.wide_data = set(R[0])
        elif mn.startswith("s_load") or mn in ("s_memtime", "s_memrealtime"):
            self.kind = "smem"
            self.defs = set(R[0])
            for r in R[1:]:
                self.uses |= set(r)
        elif mn == "s_waitcnt":
            self.kind = "rawwait"
        elif mn == "s_barrier":
            self.kind = "barrier"
        elif mn in ("s_nop", "s_sleep", "s_setprio", "s_endpgm"):
            self.kind = "misc"
        elif mn.startswith("s_cbranch") or mn == "s_branch":
            self.kind = "branch"
            if "vcc" in mn:
                self.uses.add(("s", "vcc"))
        elif mn.startswith("s_cmp") or mn.startswith("s_bitcmp"):
            self.kind = "salu"
            for r in R:
                self.uses |= set(r)
        elif mn.startswith("s_"):
            self.kind = "salu"
            self.defs = set(R[0])
            for r in R[1:]:
                self.uses |= set(r)
            if "saveexec" in mn:
                self.defs.add(("s", "exec"))
        else:
            raise ValueError("unknown instr: " + self.text)

    def size(self):
        return None


class Wait:
    kind = "wait"

    def __init__(self, targets=(), lgkm0=False, vm0=False):
        self.targets = list(targets)
        self.lgkm0, self.vm0 = lgkm0, vm0


class Raw:
    kind = "raw"

    def __init__(self, text, vm0=False, lgkm0=False):
        self.text = text
        self.vm0, self.lgkm0 = vm0, lgkm0


def I(text):
    out = []
    for l in text.split("\n"):
        l = l.strip()
        if not l or l.startswith(";"):
            continue
        out.append(Ins(l))
    return out


def flat(x):
    out = []
    for e in x:
        if isinstance(e, (list, tuple)):
            out += flat(e)
        else:
            out.append(e)
    return out


def spread(main, fill, lo=0, hi=None):
    n = len(main)
    hi = n if hi is None else hi
    out = []
    m = len(fill)
    fi = 0
    span = max(1, hi - lo)
    for i, x in enumerate(main):
        cur = [x]
        if lo <= i < hi:
            tgt = ((i - lo + 1) * m + span - 1) // span
            while fi < min(tgt, m):
                cur.append(fill[fi])
                fi += 1
        out.append(cur)
    if fi < m:
        out.append(fill[fi:])
    return out


VM = ("vload", "vstore", "dma")


def finalize(prog, stats=None):
    prog = flat(prog)
    out = []
    hist = []
    vmq, lgq = [], []
    nnop = nwait = 0

    def emit(ins, states=1):
        out.append("    " + ins.text if ins.kind not in ("label",) else ins.text)
        if ins.kind not in ("label", "directive"):
            hist.append((ins, states))
            if len(hist) > 40:
                del hist[0]

    def do_wait(vm_n, lg_n):
        nonlocal nwait
        parts = []
        if vm_n is not None and vm_n < len(vmq):
            vm_n = min(vm_n, 63)
            parts.append(f"vmcnt({vm_n})")
            del vmq[: len(vmq) - vm_n]
        if lg_n is not None and lg_n < len(lgq):
            if any(o.kind == "smem" for o in lgq):
                lg_n = 0
            lg_n = min(lg_n, 15)
            parts.append(f"lgkmcnt({lg_n})")
            del lgq[: len(lgq) - lg_n]
        if parts:
            nwait += 1
            emit(Ins("s_waitcnt " + " ".join(parts)))

    def need(q, pred):
        for idx in range(len(q) - 1, -1, -1):
            if pred(q[idx]):
                return len(q) - 1 - idx
        return None

    for ins in prog:
        if ins.kind == "wait":
            tg = set(id(t) for t in ins.targets)
            vm_n = 0 if ins.vm0 else need(vmq, lambda o: id(o) in tg)
            lg_n = 0 if ins.lgkm0 else need(lgq, lambda o: id(o) in tg)
            do_wait(vm_n, lg_n)
            continue
        if ins.kind == "raw":
            out.append(ins.text)
            if ins.vm0:
                vmq.clear()
            if ins.lgkm0:
                lgq.clear()
            continue
        if ins.kind == "rawwait":
            m = re.search(r"vmcnt\((\d+)\)", ins.text)
            if m and int(m.group(1)) < len(vmq):
                del vmq[: len(vmq) - int(m.group(1))]
            m = re.search(r"lgkmcnt\((\d+)\)", ins.text)
            if m and int(m.group(1)) < len(lgq):
                del lgq[: len(lgq) - int(m.group(1))]
            emit(ins)
            continue
        touched = ins.defs | ins.uses
        if touched:
            vm_t = ins.uses if ins.kind == "vload" else touched
            lg_t = ins.uses if (ins.kind == "ds" and not any(o.kind == "smem" for o in lgq)) else touched
            vm_n = need(vmq, lambda o: o.defs & vm_t)
            lg_n = need(lgq, lambda o: o.defs & lg_t)
            do_wait(vm_n, lg_n)
        req = 0
        dist = 0
        isvalu = ins.kind in ("valu", "trans")
        for p, st in reversed(hist):
            r = 0
            pv = p.kind in ("valu", "trans")
            if p.kind == "mfma":
                big = {4: 8, 8: 12}[p.passes]
                if ins.kind == "mfma":
                    if p.defs & (ins.uses - ins.srcc):
                        r = big
                    elif p.defs & ins.srcc:
                        if not (p.defs == ins.srcc and p.passes == ins.passes):
                            r = big - 2
                    elif p.defs & ins.defs:
                        r = big - 2
                elif p.defs & touched:
                    r = big
                if isvalu and (p.srcc & ins.defs):
                    r = max(r, {4: 3, 8: 7}[p.passes])
            if pv:
                vd = {d for d in p.defs if d[0] in "va"}
                sd = {d for d in p.defs if d[0] == "s"}
                if ins.kind == "mfma" and vd & ins.uses:
                    r = max(r, 2)
                if p.kind == "trans" and ins.kind != "trans" and vd & ins.uses:
                    r = max(r, 1)
                if p.opsel_dst and isvalu and vd & touched:
                    r = max(r, 1)
                if ins.mn.startswith(("v_readfirstlane", "v_readlane")) and vd & ins.uses:
                    r = max(r, 1)
                if ins.mn.startswith("v_permlane") and vd & ins.uses:
                    r = max(r, 2)
                if ins.dpp and vd & ins.uses:
                    r = max(r, 2)
                if sd & ins.uses:
                    if ins.kind in VM:
                        r = max(r, 5)
                    elif ins.mn.startswith(("v_readlane", "v_writelane")):
                        r = max(r, 4)
                    elif isvalu:
                        r = max(r, 2)
                    elif ins.kind in ("salu", "smem"):
                        r = max(r, 1)
            if p.kind == "vstore" and p.wide_data & ins.defs:
                r = max(r, 2)
            if p.kind == "salu" and ("s", "m0") in p.defs and ins.kind == "dma":
                r = max(r, 1)
            if p.kind == "salu" and ("s", "m0") in p.defs and ins.mn.startswith("v_writelane"):
                r = max(r, 1)
            if r > dist:
                req = max(req, r - dist)
            dist += st
            if dist >= 20:
                break
        if req:
            nnop += 1
            emit(Ins(f"s_nop {req - 1}"), req)
        st = 1
        if ins.mn == "s_nop":
            st = int(ins.text.split()[1]) + 1
        emit(ins, st)
        if ins.kind in VM:
            vmq.append(ins)
        elif ins.kind in ("ds", "smem"):
            lgq.append(ins)
    if stats is not None:
        stats["nops"] = stats.get("nops", 0) + nnop
        stats["waits"] = stats.get("waits", 0) + nwait
    return "\n".join(out) + "\n"


class Alloc:
    def __init__(self, kind, lo, hi):
        self.kind = kind
        self.free = set(range(lo, hi))
        self.hw = lo

    def get(self, n=1, align=None):
        align = align or (1 if n == 1 else (2 if n < 4 or self.kind != "s" else 4))
        for b in sorted(self.free):
            if b % align == 0 and all((b + i) in self.free for i in range(n)):
                for i in range(n):
                    self.free.discard(b + i)
                self.hw = max(self.hw, b + n)
                return b
        raise RuntimeError(f"out of {self.kind} regs (want {n}), free={sorted(self.free)}")

    def put(self, b, n=1):
        for i in range(n):
            assert (b + i) not in self.free, (b, i)
            self.free.add(b + i)


def vr(b, n=1, k="v"):
    return f"{k}{b}" if n == 1 else f"{k}[{b}:{b + n - 1}]"
```

```python
import sys, struct, math
from kgen import *

NAME = "recurrent_scan__ssm_conv_s5__dense_activation_gelu__prompt"

WS_EPOCH = 0
WS_F0 = 0x1000
WS_F1 = 0x10000
WS_STATS = 0x30000
WS_EG = 0x60000
WS_WP = 0x100000
WS_HID = 0x500000
WS_DBG = 0x1200000
WS_SIZE = 0x1300000
OOB = 0x70000000

L_X = 0
L_W = 49152
L_CST = 122880
L_TAB = 143360
L_ST = 155648
L_SEG = 156672
LDS_BYTES = 163840


def f32(x):
    return "0x%08x" % struct.unpack("<I", struct.pack("<f", x))[0]


class Cfg:
    diag = False
    rel_ld = 0
    rel_proc = 3
    f0_flag = 7
    f0_poll = 13
    out_aux = ""
    spin = 200000


def build_path(ssm, cfg):
    T = "S" if ssm else "F"
    V = Alloc("v", 1, 56)
    S = Alloc("s", 60, 76 if cfg.diag else 100)
    P = []
    nstamp = [0]

    def stamp():
        if not cfg.diag:
            return []
        k = 76 + 2 * nstamp[0]
        nstamp[0] += 1
        assert k + 1 < 102
        return I(f"s_memrealtime s[{k}:{k+1}]")

    sX, sW, sWS, sR, sT, sO = 36, 40, 44, 48, 52, 56

    def srd(d, ptr, size):
        return I(f"""s_mov_b32 s{d}, s{ptr}
s_mov_b32 s{d+1}, s{ptr+1}
s_mov_b32 s{d+2}, {size}
s_mov_b32 s{d+3}, 0x20000""")

    def q4(b):
        return f"s[{b}:{b+3}]"

    sRB1, sCT, sL = 3, 22, 23
    sWv, sKK, sSX, sSW, sM0X, sM0W, sTAG, sT0, sT1, sT2 = [S.get() for _ in range(10)]
    vL, vC, vQ = V.get(), V.get(), V.get()
    t0, t1, t2, t3 = [V.get() for _ in range(4)]
    vPo = V.get(4, 2)
    a0, a1, a2 = V.get(), V.get(), V.get()
    vRl, vRl2, vTag = V.get(), V.get(), V.get()

    P += stamp()
    P += I(f"""
v_lshrrev_b32 v{t0}, 6, v0
v_and_b32 v{vL}, 63, v0
v_readfirstlane_b32 s{sWv}, v{t0}
v_and_b32 v{vC}, 15, v0
v_lshrrev_b32 v{vQ}, 4, v{vL}
""")
    P += I(f"""
s_and_b32 s{sT0}, s{sCT}, 3
s_lshl_b32 s{sT0}, s{sT0}, 2
s_lshr_b32 s{sT1}, s{sCT}, 2
s_add_u32 s{sT0}, s{sT0}, s{sT1}
s_add_u32 s{sT0}, s{sT0}, s{sRB1}
s_mul_i32 s{sT1}, s{sT0}, 205
s_lshr_b32 s{sT1}, s{sT1}, 11
s_mul_i32 s{sT1}, s{sT1}, 10
s_sub_u32 s{sKK}, s{sT0}, s{sT1}
s_lshl_b32 s{sM0X}, s{sWv}, 12
s_mul_i32 s{sM0W}, s{sWv}, 6144
s_add_u32 s{sM0W}, s{sM0W}, {L_W}
""")
    vSt = 160
    vStA = 170
    P += I(f"""
s_lshl_b32 s{sT0}, s{sRB1}, 7
s_lshl_b32 s{sT1}, s{sCT}, 3
s_add_u32 s{sT0}, s{sT0}, s{sT1}
s_lshl_b32 s{sT1}, s{sWv}, 1
s_add_u32 s{sT0}, s{sT0}, s{sT1}
v_lshrrev_b32 v{t0}, 5, v{vL}
v_add_u32 v{vStA}, s{sT0}, v{t0}
v_and_b32 v{t1}, 31, v{vL}
v_mul_u32_u24 v{t0}, 1280, v{vStA}
v_lshl_add_u32 v{t2}, v{t1}, 4, v{t0}
v_lshl_add_u32 v{t3}, v{t1}, 3, v{t0}
""")
    vXo = [V.get() for _ in range(4)]
    vWo = [V.get() for _ in range(6)]
    pre = []
    pre += I(f"""
v_lshrrev_b32 v{a0}, 3, v{vL}
v_and_b32 v{a1}, 7, v{vL}
s_lshl_b32 s{sT0}, s{sRB1}, 7
""")
    for j in range(4):
        r = vXo[j]
        if not ssm:
            pre += I(f"""
s_lshl_b32 s{sT1}, s{sWv}, 5
s_add_u32 s{sT1}, s{sT1}, s{sT0}
s_add_u32 s{sT1}, s{sT1}, {8*j}
v_add_u32 v{r}, s{sT1}, v{a0}
""")
        else:
            pre += I(f"""
s_lshr_b32 s{sT1}, s{sWv}, 1
s_lshl_b32 s{sT1}, s{sT1}, 6
s_and_b32 s{sT2}, s{sWv}, 1
s_lshl_b32 s{sT2}, s{sT2}, 3
s_add_u32 s{sT1}, s{sT1}, s{sT2}
s_add_u32 s{sT1}, s{sT1}, s{sT0}
s_add_u32 s{sT1}, s{sT1}, {32*(j&1) + 4*(j>>1)}
v_lshrrev_b32 v{a2}, 5, v{vL}
v_and_b32 v{r}, 3, v{a0}
v_lshl_add_u32 v{r}, v{a2}, 4, v{r}
v_add_u32 v{r}, s{sT1}, v{r}
""")
        pre += I(f"""
v_mul_u32_u24 v{r}, 1280, v{r}
v_lshrrev_b32 v{a2}, 1, v{a0}
v_xor_b32 v{a2}, {4*(j&1)}, v{a2}
v_xor_b32 v{a2}, v{a1}, v{a2}
v_lshl_add_u32 v{r}, v{a2}, 4, v{r}
""")
        if j:
            pre += I(f"v_subrev_u32 v{r}, {1024*j}, v{r}")
    sCH0 = S.get()
    if ssm:
        pre += I(f"""
s_sub_u32 s{sT1}, s{sCT}, 9
s_mul_i32 s{sCH0}, s{sT1}, 96
s_min_u32 s{sCH0}, s{sCH0}, 544
s_lshr_b32 s{sT1}, s{sWv}, 1
s_mul_i32 s{sT1}, s{sT1}, 48
s_add_u32 s{sT1}, s{sT1}, s{sCH0}
""")
        for j in range(6):
            r = vWo[j]
            pre += I(f"""
v_add_u32 v{r}, s{sT1}, v{a0}
v_mul_u32_u24 v{r}, 1280, v{r}
v_lshrrev_b32 v{a2}, 1, v{a0}
v_xor_b32 v{a2}, {4*(j&1)}, v{a2}
v_xor_b32 v{a2}, v{a1}, v{a2}
v_lshl_add_u32 v{r}, v{a2}, 4, v{r}
""")
            if j:
                pre += I(f"v_add_u32 v{r}, {8*j*1280 - 1024*(j%3)}, v{r}")
    else:
        pre += I(f"""
s_mul_i32 s{sT1}, s{sCT}, 384
s_mul_i32 s{sT2}, s{sWv}, {16*3456}
s_add_u32 s{sT1}, s{sT1}, s{sT2}
""")
        for j in range(6):
            r = vWo[j]
            pre += I(f"""
v_add_u32 v{a0}, {64*j}, v{vL}
v_mul_u32_u24 v{a1}, 2731, v{a0}
v_lshrrev_b32 v{a1}, 16, v{a1}
v_mul_u32_u24 v{a2}, 24, v{a1}
v_sub_u32 v{a0}, v{a0}, v{a2}
v_and_b32 v{a2}, 2, v{a1}
v_xor_b32 v{a0}, v{a0}, v{a2}
v_lshrrev_b32 v{a2}, 1, v{a1}
v_and_b32 v{a2}, 4, v{a2}
v_xor_b32 v{a0}, v{a0}, v{a2}
v_mul_u32_u24 v{r}, 3456, v{a1}
v_lshl_add_u32 v{r}, v{a0}, 4, v{r}
v_add_u32 v{r}, s{sT1}, v{r}
""")
            if j % 3:
                pre += I(f"v_subrev_u32 v{r}, {1024*(j%3)}, v{r}")
    P += pre
    P += srd(sX, 4, 2048 * 1280)
    P += I(f"""
buffer_load_dwordx4 v[{vSt}:{vSt+3}], v{t2}, {q4(sX)}, 0 offen
buffer_load_dwordx4 v[{vSt+4}:{vSt+7}], v{t2}, {q4(sX)}, 0 offen offset:512
buffer_load_dwordx2 v[{vSt+8}:{vSt+9}], v{t3}, {q4(sX)}, 0 offen offset:1024
s_load_dword s{sTAG}, s[34:35], {WS_EPOCH}
""")
    if ssm:
        P += I(f"""
s_bitcmp1_b32 s{sWv}, 0
s_cselect_b32 s{sW}, s12, s10
s_cselect_b32 s{sW+1}, s13, s11
s_mov_b32 s{sW+2}, {640*1280}
s_mov_b32 s{sW+3}, 0x20000
s_cselect_b32 s{sR}, s16, s14
s_cselect_b32 s{sR+1}, s17, s15
s_mov_b32 s{sR+2}, {640*1280}
s_mov_b32 s{sR+3}, 0x20000
""")
        vPar = 200
        P += I(f"""
s_and_b32 s{sT1}, s{sWv}, 1
s_mul_i32 s{sT1}, s{sT1}, 48
s_add_u32 s{sT1}, s{sT1}, s{sCH0}
v_add_u32 v{a0}, s{sT1}, v{vC}
v_lshlrev_b32 v{a0}, 1, v{a0}
""")
        for k, ptr in enumerate((6, 8, 18)):
            P += srd(sT, ptr, 1280)
            for n in range(3):
                P += I(f"buffer_load_ushort v{vPar+3*k+n}, v{a0}, {q4(sT)}, 0 offen offset:{32*n}")
    else:
        P += srd(sW, 24, 640 * 3456)
        P += srd(sR, 28, 1728 * 1280)
    P += srd(sWS, 34, WS_SIZE)
    P += srd(sO, 32, 2048 * 2560)

    WSTEP = 128 if ssm else 64 * 3456

    def dma(i):
        slot = i % 3
        g = []
        head = I(f"""s_lshl_b32 s{sSX}, s{sKK}, 7
s_add_u32 m0, s{sM0X}, {slot*16384}""")
        if not ssm:
            head = I(f"s_mul_i32 s{sSW}, s{sKK}, {WSTEP}") + head
        sw = sSX if ssm else sSW
        for j in range(4):
            x = I(f"buffer_load_dwordx4 v{vXo[j]}, {q4(sX)}, s{sSX} offen offset:{1024*j} lds")
            g.append((head if j == 0 else []) + x)
        for j in range(6):
            h = []
            if j % 3 == 0:
                h = I(f"s_add_u32 m0, s{sM0W}, {slot*24576 + 1024*j}")
                if j == 0:
                    h += I(f"s_add_u32 s{sKK}, s{sKK}, 1")
                else:
                    h += I(f"s_cmp_eq_u32 s{sKK}, 10\ns_cselect_b32 s{sKK}, 0, s{sKK}")
            g.append(h + I(f"buffer_load_dwordx4 v{vWo[j]}, {q4(sW)}, s{sw} offen offset:{1024*(j%3)} lds"))
        return g

    D = [dma(i) for i in range(10)]
    P += D[0]
    P += I(f"""
v_lshlrev_b32 v{a0}, 21, v{vL}
v_add_u32 v{a0}, 0xff00, v{a0}
buffer_load_dword a255, v{a0}, {q4(sWS)}, 0 offen
buffer_load_dword a255, v{a0}, {q4(sO)}, 0 offen
s_getpc_b64 s[{sT}:{sT+1}]
L_{T}_pc:
s_mov_b32 s{sT+2}, L_{T}_end-L_{T}_pc
s_mov_b32 s{sT+3}, 0x20000
v_lshlrev_b32 v{a0}, 7, v0
buffer_load_dword a255, v{a0}, {q4(sT)}, 0 offen
""")
    vU = 172
    st = []
    for k in range(10):
        st += I(f"v_lshlrev_b32 v{vU+2*k}, 16, v{vSt+k}\nv_and_b32 v{vU+2*k+1}, 0xffff0000, v{vSt+k}")
    acc = vSt
    st += I(f"v_pk_add_f32 v[{acc}:{acc+1}], v[{vU}:{vU+1}], v[{vU+2}:{vU+3}]")
    for k in range(2, 10):
        st += I(f"v_pk_add_f32 v[{acc}:{acc+1}], v[{acc}:{acc+1}], v[{vU+2*k}:{vU+2*k+1}]")

    def red32(r, tmp):
        o = []
        for sh in (8, 4, 2, 1):
            o += I(f"v_add_f32_dpp v{r}, v{r}, v{r} row_ror:{sh} row_mask:0xf bank_mask:0xf")
        o += I(f"v_mov_b32 v{tmp}, v{r}\nv_permlane16_swap_b32 v{r}, v{tmp}\nv_add_f32 v{r}, v{r}, v{tmp}")
        return o
    m = vSt + 2
    st += I(f"v_add_f32 v{m}, v{acc}, v{acc+1}")
    st += red32(m, m + 1)
    st += I(f"v_mul_f32 v{m}, {f32(1/640)}, v{m}")
    for k in range(10):
        st += I(f"v_pk_add_f32 v[{vU+2*k}:{vU+2*k+1}], v[{vU+2*k}:{vU+2*k+1}], v[{m}:{m+1}] op_sel_hi:[1,0] neg_lo:[0,1] neg_hi:[0,1]")
    st += I(f"v_pk_mul_f32 v[{acc}:{acc+1}], v[{vU}:{vU+1}], v[{vU}:{vU+1}]")
    for k in range(1, 10):
        st += I(f"v_pk_fma_f32 v[{acc}:{acc+1}], v[{vU+2*k}:{vU+2*k+1}], v[{vU+2*k}:{vU+2*k+1}], v[{acc}:{acc+1}]")
    va = vSt + 4
    st += I(f"v_add_f32 v{va}, v{acc}, v{acc+1}")
    st += red32(va, va + 1)

    def rbf(r):
        return I(f"v_cvt_pk_bf16_f32 v{r}, v{r}, v{r}\nv_lshlrev_b32 v{r}, 16, v{r}")
    st += I(f"v_mul_f32 v{va}, {f32(1/640)}, v{va}")
    st += rbf(va) + rbf(m)
    st += I(f"v_add_f32 v{va}, {f32(1e-5)}, v{va}")
    st += rbf(va)
    st += I(f"v_sqrt_f32 v{va}, v{va}")
    st += rbf(va)
    st += I(f"""v_rcp_f32 v{va}, v{va}
v_lshrrev_b32 v{t0}, 3, v{vStA}
v_and_b32 v{t2}, 7, v{vStA}
v_mul_f32 v{va+1}, v{m}, v{va}
v_lshlrev_b32 v{t0}, 7, v{t0}
v_lshl_add_u32 v{t0}, v{t2}, 3, v{t0}
v_add_u32 v{t0}, {WS_STATS}, v{t0}
v_cmp_eq_u32 vcc, 0, v{t1}
v_mov_b32 v{t2}, {OOB}
v_cndmask_b32 v{t0}, v{t2}, v{t0}, vcc""")
    st_store = I(f"buffer_store_dwordx2 v[{va}:{va+1}], v{t0}, {q4(sWS)}, 0 offen sc1")
    st += st_store
    st += I(f"s_mul_i32 s{sTAG}, s{sTAG}, 1664525\ns_add_u32 s{sTAG}, s{sTAG}, 1013904223")

    vbX = [V.get(), V.get()]
    st += I(f"""
s_lshr_b32 s{sT0}, s{sWv}, 1
s_lshl_b32 s{sT0}, s{sT0}, 13
v_lshrrev_b32 v{a0}, 1, v{vC}
v_xor_b32 v{a0}, v{vQ}, v{a0}
v_lshlrev_b32 v{a1}, 7, v{vC}
v_lshl_add_u32 v{a1}, v{a0}, 4, v{a1}
v_add_u32 v{vbX[0]}, s{sT0}, v{a1}
v_xor_b32 v{vbX[1]}, 64, v{vbX[0]}
""")
    if ssm:
        vbW = [V.get(), V.get()]
        st += I(f"""
s_and_b32 s{sT0}, s{sWv}, 1
s_mul_i32 s{sT0}, s{sT0}, 12288
s_add_u32 s{sT0}, s{sT0}, {L_W}
v_add_u32 v{vbW[0]}, s{sT0}, v{a1}
v_xor_b32 v{vbW[1]}, 64, v{vbW[0]}
""")
    else:
        vbW = [V.get() for _ in range(6)]
        st += I(f"""
v_bfe_u32 v{a0}, v{vL}, 2, 2
v_lshl_add_u32 v{a1}, v{vQ}, 3, v{a0}
v_mul_u32_u24 v{a1}, 384, v{a1}
v_and_b32 v{a2}, 1, v{vL}
v_lshl_add_u32 v{a1}, v{a2}, 3, v{a1}
v_add_u32 v{a1}, {L_W}, v{a1}
v_and_b32 v{a0}, 2, v{a0}
v_and_b32 v{a2}, 1, v{vQ}
v_lshl_or_b32 v{a0}, v{a2}, 2, v{a0}
v_bfe_u32 v{a2}, v{vL}, 1, 1
s_and_b32 s{sT0}, s{sWv}, 1
s_mul_i32 s{sT0}, s{sT0}, 12
v_add_u32 v{a2}, s{sT0}, v{a2}
""")
        for ft in range(6):
            st += I(f"""
v_add_u32 v{vbW[ft]}, {2*ft}, v{a2}
v_xor_b32 v{vbW[ft]}, v{vbW[ft]}, v{a0}
v_lshl_add_u32 v{vbW[ft]}, v{vbW[ft]}, 4, v{a1}
""")
    if ssm:
        A, B = vU, vU + 3
        n1, n2, wa, wb = vU + 6, vU + 7, vU + 8, vU + 9
        o = vU + 10
        u0, u1, u2 = vU + 12, vU + 13, vU + 14
        cf = vU + 16
        tb = []
        tb += I(f"""
s_lshr_b32 s{sT0}, s{sWv}, 1
s_lshl_b32 s{sT0}, s{sT0}, 2
v_add_u32 v{u0}, s{sT0}, v{vQ}
v_lshlrev_b32 v{n1}, 8, v{u0}
v_cvt_f32_u32 v{n1}, v{n1}
v_subrev_u32 v{u1}, 1, v{u0}
v_lshlrev_b32 v{u1}, 4, v{u1}
v_add_u32 v{u2}, 1, v{u0}
v_cmp_gt_u32 vcc, 2, v{u0}
v_cndmask_b32 v{n2}, v{u1}, v{u2}, vcc
v_cvt_f32_u32 v{n2}, v{n2}
s_and_b32 s{sT1}, s{sWv}, 1
s_mul_i32 s{sT1}, s{sT1}, 384
s_add_u32 s{sT1}, s{sT1}, {L_TAB}
v_mul_u32_u24 v{wa}, 768, v{u0}
v_lshl_add_u32 v{u1}, v{vC}, 3, s{sT1}
v_add_u32 v{wa}, v{wa}, v{u1}
v_add_u32 v{wb}, {14*768}, v{u1}
v_mov_b32 v{u2}, {L_SEG}
v_cmp_eq_u32 vcc, 0, v{u0}
v_cndmask_b32 v{wb}, v{u2}, v{wb}, vcc
v_add_u32 v{t3}, {8*768}, v{wa}
v_cmp_eq_u32 vcc, 6, v{u0}
v_cndmask_b32 v{t3}, v{t3}, v{u2}, vcc
v_cmp_gt_u32 vcc, 6, v{u0}
""")
        for n in range(3):
            lre, lim, ldt = vPar + n, vPar + 3 + n, vPar + 6 + n
            tb += I(f"""
v_lshlrev_b32 v{lre}, 16, v{lre}
v_lshlrev_b32 v{lim}, 16, v{lim}
v_lshlrev_b32 v{ldt}, 16, v{ldt}
v_mul_f32 v{ldt}, {f32(math.log2(math.e))}, v{ldt}
v_exp_f32 v{ldt}, v{ldt}
""") + rbf(ldt) + I(f"""
v_mul_f32 v{A+n}, v{ldt}, v{lre}
v_mul_f32 v{B+n}, v{ldt}, v{lim}
v_mul_f32 v{A+n}, {f32(math.log2(math.e))}, v{A+n}
v_mul_f32 v{B+n}, {f32(1/(2*math.pi))}, v{B+n}
""")
            for which, N in enumerate((n1, n2)):
                tb += I(f"""
v_mul_f32 v{u0}, v{N}, v{A+n}
v_mul_f32 v{u1}, v{N}, v{B+n}
v_exp_f32 v{u0}, v{u0}
v_fract_f32 v{u1}, v{u1}
v_cos_f32 v{o}, v{u1}
v_sin_f32 v{o+1}, v{u1}
""")
                if which == 1:
                    tb += I(f"v_cndmask_b32 v{u0}, 0, v{u0}, vcc")
                tb += I(f"""
v_mul_f32 v{o}, v{o}, v{u0}
v_mul_f32 v{o+1}, v{o+1}, v{u0}
""")
                if which == 0:
                    tb += I(f"ds_write_b64 v{wa}, v[{o}:{o+1}] offset:{128*n}")
                else:
                    tb += I(f"ds_write_b64 v{t3}, v[{o}:{o+1}] offset:{128*n}")
            tb += I(f"""
v_add_f32 v{o}, -1.0, v{o}
v_mul_f32 v{u0}, v{lre}, v{lre}
v_fmac_f32 v{u0}, v{lim}, v{lim}
v_rcp_f32 v{u0}, v{u0}
v_mul_f32 v{cf}, v{o}, v{lre}
v_mul_f32 v{cf+1}, v{o+1}, v{lre}
v_fmac_f32 v{cf}, v{o+1}, v{lim}
v_fma_f32 v{cf+1}, -v{o}, v{lim}, v{cf+1}
v_add_f32 v{u0}, v{u0}, v{u0}
v_mul_f32 v{cf}, v{cf}, v{u0}
v_mul_f32 v{cf+1}, v{cf+1}, v{u0}
ds_write_b64 v{wb}, v[{cf}:{cf+1}] offset:{128*n}
""")
        st += tb
    P += spread(st, D[1], 8, len(st) - 4)

    vF = [80, 120]
    vA = 160
    vCS = 56
    aOne = 240
    P += I(f"v_mov_b32 v{a0}, 0x3f803f80")
    P += I("\n".join(f"v_accvgpr_write_b32 a{aOne+k}, v{a0}" for k in range(4)))

    def acc_(m, y):
        return vA + 4 * (6 * m + y)

    def reads(s):
        slot, h, b = (s // 2) % 3, s % 2, vF[s % 2]
        xs = [I(f"ds_read_b128 v[{b+4*m}:{b+4*m+3}], v{vbX[h]} offset:{slot*16384 + m*2048}") for m in range(4)]
        ws = []
        for y in range(6):
            r = b + 16 + 4 * y
            if ssm:
                ws.append(I(f"ds_read_b128 v[{r}:{r+3}], v{vbW[h]} offset:{slot*24576 + (y&1)*6144 + (y>>1)*2048}"))
            else:
                for e in range(2):
                    ws.append(I(f"ds_read_b64_tr_b16 v[{r+2*e}:{r+2*e+1}], v{vbW[y]} offset:{slot*24576 + h*12288 + e*1536}"))
        k = 1 if ssm else 2
        return ws[:k] + xs + ws[k:]

    def mfmas(s):
        b = vF[s % 2]
        o = []
        for y in range(6):
            w = vr(b + 16 + 4 * y, 4)
            for m in range(5):
                x = vr(b + 4 * m, 4) if m < 4 else vr(aOne, 4, 'a')
                d = vr(acc_(m, y), 4) if m < 4 else vr(vCS + 4 * y, 4)
                c = d if s else "0"
                o.append(I(f"v_mfma_f32_16x16x32_bf16 {d}, {x}, {w}, {c}" if ssm else f"v_mfma_f32_16x16x32_bf16 {d}, {w}, {x}, {c}"))
        return o

    fill = [[] for _ in range(20)]
    head = [[] for _ in range(20)]
    barw = [[] for _ in range(20)]
    for i in range(2, 10):
        if i == 2:
            fill[0] += D[2]
        else:
            fill[2 * i - 5] += D[i][:5]
            fill[2 * i - 4] += D[i][5:]

    sRO = 4
    P += I(f"v_lshlrev_b32 v{vRl}, 4, v{vL}")
    if not ssm:
        sRI = 5
        g = I(f"""
s_lshr_b32 s{sT0}, s{sL}, 3
s_and_b32 s{sT1}, s{sL}, 7
s_mul_i32 s{sT2}, s{sT0}, 3
s_add_u32 s{sT2}, s{sT2}, s{sWv}
s_mul_i32 s{sT2}, s{sT2}, {32*1280}
s_mul_i32 s{sRI}, s{sT1}, 160
s_add_u32 s{sRI}, s{sRI}, s{sT2}
s_mul_i32 s{sT2}, s{sWv}, 18
s_add_u32 s{sT2}, s{sT2}, s{sT0}
s_mul_i32 s{sT1}, s{sT1}, 96
s_add_u32 s{sT2}, s{sT2}, s{sT1}
s_mul_i32 s{sRO}, s{sT2}, 5120
s_add_u32 s{sRO}, s{sRO}, {WS_WP}
s_cmp_eq_u32 s{sWv}, 3
s_cselect_b32 s{sRI}, {OOB}, s{sRI}
s_cselect_b32 s{sRO}, {OOB}, s{sRO}
v_mul_u32_u24 v{a0}, {4*1280}, v{vQ}
v_lshl_add_u32 v{a1}, v{vC}, 1, v{a0}
v_lshl_add_u32 v{a0}, v{vC}, 3, v{a0}
v_add_u32 v{t0}, {16*1280}, v{a0}
v_add_u32 v{t1}, {16*1280}, v{a1}
s_mov_b32 s{sT0}, 0x05040100
s_mov_b32 s{sT1}, 0x07060302
""")
        P += g
        vRi = V.get(16, 2)
        vRs = [t2, t3, a2, vTag] + [vPo + k for k in range(4)]
        lds_ = []
        for j in range(8):
            lds_.append(I(f"buffer_load_dwordx2 v[{vRi+2*j}:{vRi+2*j+1}], v{a0 if j < 4 else t0}, {q4(sR)}, s{sRI} offen offset:{(j%4)*1280}"))
        for j in range(8):
            lds_.append(I(f"buffer_load_ushort v{vRs[j]}, v{a1 if j < 4 else t1}, {q4(sR)}, s{sRI} offen offset:{(j%4)*1280 + 128}"))
        fill[cfg.rel_ld] += lds_
        vRo = V.get(4, 2)
        pr, rel_st = [], []
        for nt in range(5):
            for jj in range(4):
                if nt < 4:
                    lo, hi = vRi + 4 * jj + (nt >> 1), vRi + 4 * jj + 2 + (nt >> 1)
                    pr.append(I(f"v_perm_b32 v{vRo+jj}, v{hi}, v{lo}, s{sT1 if nt & 1 else sT0}"))
                else:
                    pr.append(I(f"v_lshl_or_b32 v{vRo+jj}, v{vRs[2*jj+1]}, 16, v{vRs[2*jj]}"))
            x = I(f"buffer_store_dwordx4 v[{vRo}:{vRo+3}], v{vRl}, {q4(sWS)}, s{sRO} offen offset:{1024*(nt%4)} sc1")
            if nt == 3:
                x += I(f"s_add_u32 s{sRO}, s{sRO}, 4096")
            rel_st.append(x[0])
            pr.append(x)
        h = len(pr) // 2
        fill[cfg.rel_proc] += pr[:h]
        fill[cfg.rel_proc + 1] += pr[h:]
        rel_free = lambda: (V.put(vRi, 16), V.put(vRo, 4))
    else:
        sRI = 5
        vRc = [vTag] + [vPo + k for k in range(4)]
        g = I(f"""
s_sub_u32 s{sT0}, s{sL}, 144
s_and_b32 s{sT1}, s{sT0}, 7
s_lshr_b32 s{sT0}, s{sT0}, 3
s_mul_i32 s{sRI}, s{sT1}, {80*1280}
s_lshl_b32 s{sT2}, s{sT0}, 7
s_add_u32 s{sRI}, s{sRI}, s{sT2}
s_lshl_b32 s{sT2}, s{sT0}, 2
s_add_u32 s{sT2}, s{sT2}, s{sWv}
s_mul_i32 s{sT1}, s{sT1}, 96
s_add_u32 s{sT2}, s{sT2}, s{sT1}
s_add_u32 s{sT2}, s{sT2}, 56
s_mul_i32 s{sRO}, s{sT2}, 5120
s_add_u32 s{sRO}, s{sRO}, {WS_WP}
s_cmp_ge_u32 s{sT0}, 10
s_cselect_b32 s{sRI}, {OOB}, s{sRI}
s_cselect_b32 s{sRO}, {OOB}, s{sRO}
s_lshr_b32 s{sT0}, s{sWv}, 1
s_mul_i32 s{sT1}, s{sT0}, 40
v_lshrrev_b32 v{a0}, 3, v{vL}
v_add_u32 v{a0}, s{sT1}, v{a0}
v_and_b32 v{a1}, 7, v{vL}
s_mul_i32 s{sT0}, s{sT0}, 5120
s_and_b32 s{sT1}, s{sWv}, 1
s_mul_i32 s{sT1}, s{sT1}, 10240
s_add_u32 s{sT0}, s{sT0}, s{sT1}
s_add_u32 s{sT0}, s{sT0}, {L_CST}
""")
        for j in range(5):
            g += I(f"""
v_add_u32 v{a2}, {8*j}, v{a0}
v_mul_u32_u24 v{vRc[j]}, 1280, v{a2}
v_bfe_u32 v{a2}, v{a2}, 2, 3
v_xor_b32 v{a2}, v{a2}, v{a1}
v_lshl_add_u32 v{vRc[j]}, v{a2}, 4, v{vRc[j]}
""")
            if j % 4:
                g += I(f"v_subrev_u32 v{vRc[j]}, {1024*(j%4)}, v{vRc[j]}")
        g += I(f"""
v_lshrrev_b32 v{a0}, 1, v{vQ}
s_lshl_b32 s{sT1}, s{sWv}, 1
v_add_u32 v{a0}, s{sT1}, v{a0}
v_and_b32 v{a1}, 1, v{vQ}
v_lshlrev_b32 v{a1}, 3, v{a1}
v_add_u32 v{a1}, {L_CST}, v{a1}
v_and_b32 v{a2}, 7, v{vC}
v_xor_b32 v{a2}, v{a2}, v{a0}
v_lshl_add_u32 v{t0}, v{a2}, 4, v{a1}
v_lshl_add_u32 v{t0}, v{vC}, 9, v{t0}
v_lshrrev_b32 v{a2}, 2, v{vC}
v_xor_b32 v{a2}, v{a2}, v{a0}
v_lshl_add_u32 v{t1}, v{a2}, 4, v{a1}
v_lshl_add_u32 v{t1}, v{vC}, 7, v{t1}
""")
        P += g
        lds_ = []
        for j in range(5):
            h = I(f"s_add_u32 m0, s{sT0}, {4096*(j//4)}") if j % 4 == 0 else []
            lds_ += h + I(f"buffer_load_dwordx4 v{vRc[j]}, {q4(sR)}, s{sRI} offen offset:{1024*(j%4)} lds")
        assert cfg.rel_ld == 0 or cfg.rel_ld % 2 == 1
        head[cfg.rel_ld] += lds_
        rp = cfg.rel_proc | 1
        barw[rp] += [lds_[-1]]
        vRo = V.get(20, 2)
        pr, rel_st = [], []
        for nt in range(5):
            for part in range(2):
                r = vRo + 4 * nt + 2 * part
                pr.append(I(f"ds_read_b64 v[{r}:{r+1}], v{t0 if nt < 4 else t1} offset:{part*10240 + (nt*128 if nt < 4 else 64*128)}"))
        fill[rp] += pr
        pr = []
        for nt in range(5):
            r = vRo + 4 * nt
            x = I(f"buffer_store_dwordx4 v[{r}:{r+3}], v{vRl}, {q4(sWS)}, s{sRO} offen offset:{1024*(nt%4)} sc1")
            if nt == 3:
                x += I(f"s_add_u32 s{sRO}, s{sRO}, 4096")
            rel_st.append(x[0])
            pr.append(x)
        fill[rp + 1] += pr
        rel_free = lambda: V.put(vRo, 20)

    barw[cfg.f0_flag] += rel_st + st_store
    head[cfg.f0_flag] += I(f"""
s_lshl_b32 s{sT0}, s{sL}, 2
s_add_u32 s{sT0}, s{sT0}, {WS_F0}
v_mov_b32 v{vTag}, s{sTAG}
v_mov_b32 v{a0}, s{sT0}
v_mov_b32 v{a1}, {OOB}
v_cmp_eq_u32 vcc, 0, v0
v_cndmask_b32 v{a0}, v{a1}, v{a0}, vcc
buffer_store_dword v{vTag}, v{a0}, {q4(sWS)}, 0 offen sc1
""")
    rel_free()
    sCnt = 24
    pl = f"buffer_load_dwordx4 v[{vPo}:{vPo+3}], v{vRl}, {q4(sWS)}, s{sT2} offen sc1"
    fill[cfg.f0_poll] += [I(f"s_mov_b32 s{sT2}, {WS_F0}\n{pl}")]
    chk = f"""v_xor_b32 v{vPo}, s{sTAG}, v{vPo}
v_bitop3_b32 v{vPo}, v{vPo+1}, v{vTag}, v{vPo} bitop3:0xbe
v_bitop3_b32 v{vPo}, v{vPo+2}, v{vTag}, v{vPo} bitop3:0xbe
v_bitop3_b32 v{vPo}, v{vPo+3}, v{vTag}, v{vPo} bitop3:0xbe
v_cmp_ne_u32 vcc, 0, v{vPo}"""

    def poll_tail(lbl, load, check):
        return [Raw(f"""    s_cbranch_vccz L_{T}_{lbl}_ok
    s_mov_b32 s{sCnt}, 0
L_{T}_{lbl}_retry:
    {load}
    s_add_u32 s{sCnt}, s{sCnt}, 1
    s_waitcnt vmcnt(0)
    {check}
    s_cmp_ge_u32 s{sCnt}, {cfg.spin}
    s_cbranch_scc1 L_{T}_{lbl}_ok
    s_cbranch_vccnz L_{T}_{lbl}_retry
L_{T}_{lbl}_ok:""")]
    pc = cfg.f0_poll + 2
    head[pc] += I(chk) + poll_tail("f0", pl, chk)
    head[pc] += I(f"""
s_cmp_eq_u32 s2, 0
s_cselect_b32 s{sT0}, {WS_EPOCH}, {OOB}
v_lshlrev_b32 v{a0}, 24, v0
v_and_b32 v{a1}, 127, v0
v_lshrrev_b32 v{a2}, 3, v{a1}
v_and_b32 v{t0}, 7, v{a1}
v_lshlrev_b32 v{a2}, 7, v{a2}
v_lshl_add_u32 v{a2}, v{t0}, 3, v{a2}
s_lshl_b32 s{sT1}, s{sRB1}, 11
s_add_u32 s{sT1}, s{sT1}, {WS_STATS}
buffer_load_dwordx2 v[{vPo}:{vPo+1}], v{a2}, {q4(sWS)}, s{sT1} offen sc1
v_min_u32 v{a0}, 0x2000000, v{a0}
v_lshlrev_b32 v{a1}, 2, v{a1}
v_add_u32 v{a1}, {L_ST}, v{a1}
v_lshlrev_b32 v{a0}, 1, v{a0}
buffer_store_dword v{vTag}, v{a0}, {q4(sWS)}, s{sT0} offen sc1
""")
    fill[pc + 1] += [[], [], [], [], [], [], [], [], I(f"ds_write2_b32 v{a1}, v{vPo}, v{vPo+1} offset0:0 offset1:128")]

    sWP, sHA, sRB2, sCT2 = S.get(), S.get(), S.get(), S.get()
    P += I(f"""
s_and_b32 s{sRB2}, s2, 7
s_lshl_b32 s{sRB2}, s{sRB2}, 2
s_lshr_b32 s{sCT2}, s2, 6
s_add_u32 s{sRB2}, s{sRB2}, s{sCT2}
s_lshr_b32 s{sCT2}, s2, 3
s_and_b32 s{sCT2}, s{sCT2}, 7
s_mul_i32 s{sWP}, s{sCT2}, 96
s_add_u32 s{sWP}, s{sWP}, s{sWv}
s_mul_i32 s{sWP}, s{sWP}, 5120
s_add_u32 s{sWP}, s{sWP}, {WS_WP}
s_mul_i32 s{sHA}, s{sRB2}, 96
s_add_u32 s{sHA}, s{sHA}, s{sWv}
s_lshl_b32 s{sHA}, s{sHA}, 12
s_add_u32 s{sHA}, s{sHA}, {WS_HID}
v_add_u32 v{vRl2}, 4096, v{vRl}
""")
    sWo, sAo = sM0X, sM0W

    def wload(i):
        g = []
        b = 20 * (i % 12)
        h = I(f"s_add_u32 s{sWo}, s{sWP}, {i*4*5120}")
        if i == 13:
            h += I(f"s_cmp_ge_u32 s{sWv}, 2\ns_cselect_b32 s{sWo}, {OOB}, s{sWo}")
        for nt in range(5):
            x = I(f"buffer_load_dwordx4 a[{b+4*nt}:{b+4*nt+3}], v{vRl if nt < 4 else vRl2}, {q4(sWS)}, s{sWo} offen offset:{1024*(nt%4)} sc1")
            g.append((h if nt == 0 else []) + x)
        return g
    assert pc >= 15
    WL = [wload(i) for i in range(24)]
    wq = [x for i in range(12) for x in WL[i]]
    for s in range(pc, 20):
        fill[s] += wq[:5]
        wq = wq[5:]

    fb = vF[0]
    if not ssm:
        vB1 = V.get(12, 2)
        g = srd(sT, 26, 3456) + I(f"""
s_mul_i32 s{sT0}, s{sCT}, 384
s_and_b32 s{sT1}, s{sWv}, 1
s_mul_i32 s{sT1}, s{sT1}, 192
s_add_u32 s{sT0}, s{sT0}, s{sT1}
v_lshlrev_b32 v{t2}, 3, v{vQ}""")
        head[cfg.f0_flag + 2] += g
        for ft in range(6):
            fill[cfg.f0_flag + 2] += [I(f"buffer_load_dwordx2 v[{vB1+2*ft}:{vB1+2*ft+1}], v{t2}, {q4(sT)}, s{sT0} offen offset:{32*ft}")]
        vRS = fb
        vBf = fb + 8
        head[18] += I(f"""
s_lshr_b32 s{sT0}, s{sWv}, 1
s_lshl_b32 s{sT0}, s{sT0}, 8
s_add_u32 s{sT0}, s{sT0}, {L_ST}
v_lshl_add_u32 v{t2}, v{vC}, 2, s{sT0}""")
        for m in range(4):
            fill[19] += [I(f"ds_read2_b32 v[{vRS+2*m}:{vRS+2*m+1}], v{t2} offset0:{16*m} offset1:{128+16*m}")]
        for k in range(12):
            fill[19] += [I(f"v_lshlrev_b32 v{vBf+2*k}, 16, v{vB1+k}"), I(f"v_and_b32 v{vBf+2*k+1}, 0xffff0000, v{vB1+k}")]
    else:
        vRS, vMR = fb, fb + 16
        head[18] += I(f"""
s_lshr_b32 s{sT0}, s{sWv}, 1
s_lshl_b32 s{sT0}, s{sT0}, 8
s_add_u32 s{sT0}, s{sT0}, {L_ST}
v_lshl_add_u32 v{t2}, v{vQ}, 6, s{sT0}
s_and_b32 s{sT1}, s{sWv}, 1
s_mul_i32 s{sT1}, s{sT1}, 384
s_add_u32 s{sT1}, s{sT1}, {L_TAB}
v_lshl_add_u32 v{t3}, v{vC}, 3, s{sT1}""")
        for k in range(4):
            fill[19] += [I(f"ds_read_b128 v[{vRS+4*k}:{vRS+4*k+3}], v{t2} offset:{16*k}"),
                         I(f"ds_read_b128 v[{vMR+4*k}:{vMR+4*k+3}], v{t2} offset:{512+16*k}")]
        vCo, vLam = V.get(6, 2), V.get(6, 2)
        for n in range(3):
            fill[19] += [I(f"ds_read_b64 v[{vCo+2*n}:{vCo+2*n+1}], v{t3} offset:{14*768+128*n}"),
                         I(f"ds_read_b64 v[{vLam+2*n}:{vLam+2*n+1}], v{t3} offset:{8*768+128*n}")]

    P += [Wait([D[0][-1][-1]], lgkm0=True)] + I("s_barrier") + stamp() + reads(0)
    for s in range(20):
        if s % 2 == 1 and s < 19:
            P += [Wait([D[s // 2 + 1][-1][-1]] + barw[s], lgkm0=True)] + I("s_barrier")
        else:
            assert not barw[s]
        mf = mfmas(s)
        rd = reads(s + 1) if s < 19 else []
        body = spread(mf, rd, 0, 22)
        body = spread(body, fill[s], 1, 29)
        P += [body[0], head[s], body[1:]]
    P += stamp()
    for r in vXo + vWo + vbX + vbW:
        V.put(r)
    V.put(vF[1], 40)

    sHS = 25
    hid_st = []
    if not ssm:
        V.put(vB1, 12)
        P += I(f"""
s_lshl_b32 s{sT0}, s{sRB1}, 1
s_lshr_b32 s{sT1}, s{sWv}, 1
s_add_u32 s{sT0}, s{sT0}, s{sT1}
s_mul_i32 s{sT0}, s{sT0}, 96
s_lshl_b32 s{sT1}, s{sCT}, 1
s_add_u32 s{sT0}, s{sT0}, s{sT1}
s_and_b32 s{sT1}, s{sWv}, 1
s_add_u32 s{sT0}, s{sT0}, s{sT1}
s_lshl_b32 s{sT0}, s{sT0}, 12
s_add_u32 s{sHS}, s{sT0}, {WS_HID}
""")
        K0 = -2 * math.sqrt(2 / math.pi) * math.log2(math.e)
        vK = V.get(2, 2)
        P += I(f"v_mov_b32 v{vK}, {f32(K0*0.044715)}\nv_mov_b32 v{vK+1}, {f32(K0)}")
        tmp = [V.get(8, 2) for _ in range(2)]
        outq = [V.get(4, 2) for _ in range(2)]
        ep = []
        for j in range(3):
            for m in range(4):
                z, e = tmp
                o = outq[m & 1]
                prs = [(acc_(m, 2 * j + (k >> 1)) + 2 * (k & 1), 4 * (2 * j + (k >> 1)) + 2 * (k & 1)) for k in range(4)]
                rs = f"v[{vRS+2*m}:{vRS+2*m+1}]"
                p2 = lambda r: f"v[{r}:{r+1}]"
                for k, (a, c) in enumerate(prs):
                    ep += I(f"v_pk_fma_f32 {p2(z+2*k)}, {rs}, {p2(vCS+c)}, {p2(vBf+c)} op_sel:[1,0,0] op_sel_hi:[1,1,1] neg_lo:[1,0,0] neg_hi:[1,0,0]")
                for k, (a, c) in enumerate(prs):
                    ep += I(f"v_pk_fma_f32 {p2(a)}, {rs}, {p2(a)}, {p2(z+2*k)} op_sel:[0,0,0] op_sel_hi:[0,1,1]")
                for k, (a, c) in enumerate(prs):
                    ep += I(f"v_pk_mul_f32 {p2(z+2*k)}, {p2(a)}, {p2(a)}")
                for k, (a, c) in enumerate(prs):
                    ep += I(f"v_pk_fma_f32 {p2(z+2*k)}, {p2(z+2*k)}, {p2(vK)}, {p2(vK)} op_sel:[0,0,1] op_sel_hi:[1,0,1]")
                for k, (a, c) in enumerate(prs):
                    ep += I(f"v_pk_mul_f32 {p2(z+2*k)}, {p2(z+2*k)}, {p2(a)}")
                for k in range(8):
                    ep += I(f"v_exp_f32 v{e+k}, v{z+k}")
                for k in range(4):
                    ep += I(f"v_pk_add_f32 {p2(e+2*k)}, {p2(e+2*k)}, 1.0 op_sel_hi:[1,0]")
                for k in range(8):
                    ep += I(f"v_rcp_f32 v{e+k}, v{e+k}")
                for k, (a, c) in enumerate(prs):
                    ep += I(f"v_pk_mul_f32 {p2(a)}, {p2(a)}, {p2(e+2*k)}")
                for k, (a, c) in enumerate(prs):
                    ep += I(f"v_cvt_pk_bf16_f32 v{o+k}, v{a}, v{a+1}")
                x = I(f"buffer_store_dwordx4 v[{o}:{o+3}], v{vRl}, {q4(sWS)}, s{sHS} offen offset:{1024*m} sc1")
                hid_st += x
                ep += x
            if j < 2:
                ep += I(f"s_add_u32 s{sHS}, s{sHS}, {18*4096}")
        nw = len(wq) - 6
        P += spread(ep, wq[:nw])
        P += wq[nw:]
        wq = []
        V.put(vK, 2); [V.put(r, 8) for r in tmp]; [V.put(r, 4) for r in outq]
        V.put(vF[0], 40)
    else:
        p2 = lambda r: f"v[{r}:{r+1}]"
        ep = []
        tt = V.get(2, 2)
        for n in range(3):
            for part in range(2):
                y = 2 * n + part
                for m in range(4):
                    for h in range(2):
                        a = acc_(m, y) + 2 * h
                        ep += I(f"v_pk_mul_f32 {p2(tt)}, {p2(vMR+4*m+2*h)}, {p2(vCS+4*y)}")
                        ep += I(f"v_pk_fma_f32 {p2(a)}, {p2(vRS+4*m+2*h)}, {p2(a)}, {p2(tt)} neg_lo:[0,0,1] neg_hi:[0,0,1]")
        W = [[None] * 16 for _ in range(3)]
        spare = tt
        for n in range(3):
            co = p2(vCo + 2 * n)
            for m in range(4):
                for h in range(2):
                    re_, im_ = acc_(m, 2 * n) + 2 * h, acc_(m, 2 * n + 1) + 2 * h
                    tau = 4 * m + 2 * h
                    ep += I(f"""v_pk_mul_f32 {p2(spare)}, {co}, {p2(re_)} op_sel:[0,0] op_sel_hi:[1,0]
v_pk_mul_f32 {p2(re_)}, {co}, {p2(re_)} op_sel:[0,1] op_sel_hi:[1,1]
v_pk_fma_f32 {p2(spare)}, {co}, {p2(im_)}, {p2(spare)} op_sel:[1,0,0] op_sel_hi:[0,0,1] neg_lo:[1,0,0]
v_pk_fma_f32 {p2(re_)}, {co}, {p2(im_)}, {p2(re_)} op_sel:[1,1,0] op_sel_hi:[0,1,1] neg_lo:[1,0,0]""")
                    W[n][tau], W[n][tau + 1] = spare, re_
                    spare = im_

        def cfma(d, l, x, add, tmp_):
            return I(f"""v_pk_fma_f32 {p2(tmp_)}, {p2(l)}, {p2(x)}, {p2(add)} op_sel:[0,0,0] op_sel_hi:[0,1,1]
v_pk_fma_f32 {p2(d)}, {p2(l)}, {p2(x)}, {p2(tmp_)} op_sel:[1,1,0] op_sel_hi:[1,0,1] neg_lo:[1,0,0]""")

        def cmul(d, l, x, tmp_):
            return I(f"""v_pk_mul_f32 {p2(tmp_)}, {p2(l)}, {p2(x)} op_sel:[0,0] op_sel_hi:[0,1]
v_pk_fma_f32 {p2(d)}, {p2(l)}, {p2(x)}, {p2(tmp_)} op_sel:[1,1,0] op_sel_hi:[1,0,1] neg_lo:[1,0,0]""")
        vE = V.get(6, 2)
        vTm = V.get(2, 2)
        for n in range(3):
            ep += cfma(vE + 2 * n, vLam + 2 * n, W[n][0], W[n][1], vTm)
            for tau in range(2, 16):
                ep += cfma(vE + 2 * n, vLam + 2 * n, vE + 2 * n, W[n][tau], vTm)
        nw = 20
        P += spread(ep, wq[:nw])
        wq = wq[nw:]
        V.put(vF[0], 40)
        V.put(vCo, 6)
        vNb = V.get(18, 2)
        vWt = V.get(18, 2)
        vL16 = V.get(6, 2)
        vPx = V.get(6, 2)
        P += I(f"""
s_lshr_b32 s{sT0}, s{sWv}, 1
s_lshl_b32 s{sT0}, s{sT0}, 2
v_add_u32 v{a2}, s{sT0}, v{vQ}
v_mul_u32_u24 v{a0}, 768, v{a2}
v_add_u32 v{a0}, v{a0}, v{t3}
v_add_u32 v{a0}, {L_SEG - L_TAB}, v{a0}
""")
        for n in range(3):
            P += I(f"ds_write_b64 v{a0}, {p2(vE+2*n)} offset:{128*n}")
        for n in range(3):
            P += I(f"ds_read_b64 {p2(vL16+2*n)}, v{t3} offset:{10*768+128*n}")
        for d in range(1, 4):
            P += I(f"""
v_cmp_le_u32 vcc, {d}, v{vQ}
v_subrev_u32 v{a1}, {768*d}, v{a0}
v_add_u32 v{t0}, {15*768}, v{t3}
v_cndmask_b32 v{a1}, v{t0}, v{a1}, vcc
""")
            for n in range(3):
                P += I(f"ds_read_b64 {p2(vNb+6*(d-1)+2*n)}, v{a1} offset:{128*n}")
            if d == 3:
                for n in range(3):
                    P += I(f"ds_read_b64 {p2(vWt+2*n)}, v{t3} offset:{11*768+128*n}")
        for n in range(3):
            P += cfma(vPx + 2 * n, vL16 + 2 * n, vNb + 6 + 2 * n, vNb + 2 * n, vTm)
            P += cfma(vPx + 2 * n, vWt + 2 * n, vNb + 12 + 2 * n, vPx + 2 * n, vTm)
            P += cfma(vE + 2 * n, vL16 + 2 * n, vPx + 2 * n, vE + 2 * n, vTm)
        vTb = V.get()
        P += I(f"""
v_and_b32 v{t0}, 3, v{vC}
v_lshlrev_b32 v{t0}, 3, v{t0}
v_lshrrev_b32 v{vTb}, v{t0}, v{vTag}
v_and_b32 v{vTb}, 0xff, v{vTb}
s_sub_u32 s{sT0}, s{sCT}, 9
s_lshl_b32 s{sT0}, s{sT0}, 1
s_and_b32 s{sT1}, s{sWv}, 1
s_add_u32 s{sT0}, s{sT0}, s{sT1}
s_mul_i32 s{sT0}, s{sT0}, 384
s_add_u32 s{sT0}, s{sT0}, {WS_EG}
s_lshl_b32 s{sT1}, s{sRB1}, 1
s_lshr_b32 s{sT2}, s{sWv}, 1
s_add_u32 s{sT2}, s{sT2}, s{sT1}
s_mul_i32 s{sT2}, s{sT2}, {14*384}
s_add_u32 s{sT2}, s{sT2}, s{sT0}
v_lshlrev_b32 v{t0}, 3, v{vC}
v_mov_b32 v{t1}, {OOB}
v_cmp_eq_u32 vcc, 3, v{vQ}
v_cndmask_b32 v{t1}, v{t1}, v{t0}, vcc
v_mov_b32 v{t2}, 0xff
""")
        eg_st = []
        for n in range(3):
            P += I(f"v_bfi_b32 v{vNb+2*n}, v{t2}, v{vTb}, v{vE+2*n}\nv_mov_b32 v{vNb+2*n+1}, v{vE+2*n+1}")
            x = I(f"buffer_store_dwordx2 {p2(vNb+2*n)}, v{t1}, {q4(sWS)}, s{sT2} offen offset:{128*n} sc1")
            eg_st += x
            P += x
        P += stamp()
        for n in range(3):
            P += I(f"ds_write_b64 v{a0}, {p2(vE+2*n)} offset:{128*n}")
        vG = V.get(24, 2)
        vGa = [V.get() for _ in range(4)]
        vGt = [V.get() for _ in range(4)]
        for i in range(4):
            P += I(f"""
v_lshlrev_b32 v{a1}, 2, v{a2}
v_sub_u32 v{a1}, s{sT1}, v{a1}
v_subrev_u32 v{a1}, {1+i}, v{a1}
v_cmp_le_i32 vcc, 0, v{a1}
v_mul_u32_u24 v{a1}, {14*384}, v{a1}
v_add_u32 v{a1}, v{a1}, v{t0}
v_mov_b32 v{vGa[i]}, {OOB}
v_cndmask_b32 v{vGa[i]}, v{vGa[i]}, v{a1}, vcc
v_cndmask_b32 v{vGt[i]}, 0, v{vTb}, vcc
""")
        vL64, vLg, vLq = vWt, vWt + 6, vWt + 12
        P += I(f"""
v_mul_u32_u24 v{a1}, 768, v{a2}
v_add_u32 v{a1}, v{a1}, v{t3}
v_add_u32 v{t1}, 9, v{vQ}
v_cmp_eq_u32 vcc, 0, v{vQ}
v_cndmask_b32 v{t1}, v{t1}, v{vQ}, vcc
v_mul_u32_u24 v{t1}, 768, v{t1}
v_add_u32 v{t1}, v{t1}, v{t3}
""")
        for n in range(3):
            P += I(f"""ds_read_b64 {p2(vL64+2*n)}, v{t3} offset:{13*768+128*n}
ds_read_b64 {p2(vLg+2*n)}, v{a1} offset:{128*n}
ds_read_b64 {p2(vLq+2*n)}, v{t1} offset:{128*n}""")
        P += wq[:6]
        wq = wq[6:]
        P += [Wait(eg_st)]
        gl = "\n".join(f"buffer_load_dwordx2 {p2(vG+6*i+2*n)}, v{vGa[i]}, {q4(sWS)}, s{sT0} offen offset:{128*n} sc1" for i in range(4) for n in range(3))
        gc = f"v_xor_b32 v{a1}, v{vG}, v{vGt[0]}\n" + "\n".join(
            f"v_bitop3_b32 v{a1}, v{vG+6*i+2*n}, v{vGt[i]}, v{a1} bitop3:0xbe" for i in range(4) for n in range(3) if i + n) + \
            f"\nv_and_b32 v{a1}, 0xff, v{a1}\nv_cmp_ne_u32 vcc, 0, v{a1}"
        P += I(gl) + I(gc) + poll_tail("eg", gl.replace("\n", "\n    "), gc.replace("\n", "\n    "))
        P += stamp()
        vH = vNb
        for n in range(3):
            P += cfma(vH + 2 * n, vL64 + 2 * n, vG + 18 + 2 * n, vG + 12 + 2 * n, vTm)
            P += cfma(vH + 2 * n, vL64 + 2 * n, vH + 2 * n, vG + 6 + 2 * n, vTm)
            P += cfma(vH + 2 * n, vL64 + 2 * n, vH + 2 * n, vG + 2 * n, vTm)
            P += cmul(vH + 2 * n, vLg + 2 * n, vH + 2 * n, vTm)
        for k in range(6):
            P += I(f"v_mov_b32 v{vH+6+k}, v{vH+k}")
        for k in range(6):
            P += I(f"v_permlane32_swap_b32 v{vH+k}, v{vH+6+k}")
        for n in range(3):
            P += I(f"v_pk_add_f32 {p2(vH+2*n)}, {p2(vH+2*n)}, {p2(vH+6+2*n)}")
        for k in range(6):
            P += I(f"v_mov_b32 v{vH+6+k}, v{vH+k}")
        for k in range(6):
            P += I(f"v_permlane16_swap_b32 v{vH+k}, v{vH+6+k}")
        for n in range(3):
            P += I(f"v_pk_add_f32 {p2(vH+2*n)}, {p2(vH+2*n)}, {p2(vH+6+2*n)}")
        P += I(f"""
s_lshr_b32 s{sT0}, s{sWv}, 1
s_lshl_b32 s{sT0}, s{sT0}, 10
v_subrev_u32 v{a1}, {L_TAB - L_CST}, v{t3}
v_add_u32 v{a1}, s{sT0}, v{a1}
v_xor_b32 v{t1}, 1024, v{a1}
""")
        for n in range(3):
            P += I(f"ds_write_b64 v{a1}, {p2(vH+2*n)} offset:{128*n}")
        P += I(f"""
s_cmp_ge_u32 s{sWv}, 2
s_cselect_b32 s{sT0}, {13*768}, 0
s_cselect_b32 s{sT1}, {L_SEG - L_TAB + 3*768 - 15*768}, 0
s_add_u32 s{sT1}, s{sT1}, {15*768}
v_add_u32 v{t0}, s{sT0}, v{t3}
v_add_u32 v{t2}, s{sT1}, v{t3}
""")
        P += [Wait(lgkm0=True)] + I("s_barrier")
        for n in range(3):
            P += I(f"""ds_read_b64 {p2(vH+6+2*n)}, v{t1} offset:{128*n}
ds_read_b64 {p2(vG+2*n)}, v{t0} offset:{128*n}
ds_read_b64 {p2(vG+6+2*n)}, v{t2} offset:{128*n}""")
        for n in range(3):
            P += I(f"v_pk_add_f32 {p2(vH+2*n)}, {p2(vH+2*n)}, {p2(vH+6+2*n)}")
            P += cfma(vH + 2 * n, vG + 2 * n, vH + 2 * n, vG + 6 + 2 * n, vTm)
            P += cfma(vH + 2 * n, vLq + 2 * n, vH + 2 * n, vPx + 2 * n, vTm)
        LT, BLK = 16384, 16 * 144
        P += I(f"""
s_and_b32 s{sT0}, s{sWv}, 1
s_mul_i32 s{sT0}, s{sT0}, 16384
s_cmp_ge_u32 s{sWv}, 2
s_cselect_b32 s{sT1}, {73728 - 16384}, 0
s_add_u32 s{sT0}, s{sT0}, s{sT1}
s_add_u32 s{sT0}, s{sT0}, 16384
v_mul_u32_u24 v{a0}, 144, v{vC}
v_lshl_add_u32 v{a0}, v{vQ}, 5, v{a0}
v_add_u32 v{a0}, s{sT0}, v{a0}
v_lshrrev_b32 v{a1}, 2, v{vL}
v_mul_u32_u24 v{a1}, 144, v{a1}
v_and_b32 v{a2}, 3, v{vL}
v_lshl_add_u32 v{a1}, v{a2}, 3, v{a1}
v_add_u32 v{a1}, s{sT0}, v{a1}
s_lshl_b32 s{sT0}, s{sRB1}, 1
s_lshr_b32 s{sT1}, s{sWv}, 1
s_add_u32 s{sT0}, s{sT0}, s{sT1}
s_mul_i32 s{sT0}, s{sT0}, 96
s_lshr_b32 s{sT1}, s{sCH0}, 4
s_add_u32 s{sT0}, s{sT0}, s{sT1}
s_and_b32 s{sT1}, s{sWv}, 1
s_mul_i32 s{sT1}, s{sT1}, 3
s_add_u32 s{sT0}, s{sT0}, s{sT1}
s_add_u32 s{sT0}, s{sT0}, 56
s_lshl_b32 s{sT0}, s{sT0}, 12
s_add_u32 s{sHS}, s{sT0}, {WS_HID}
""")
        vPk = vG
        vTr = vCS
        ep = []
        pend = []
        for n in range(3):
            prev = vH + 2 * n
            blk = []
            for tau in range(16):
                blk += cfma(W[n][tau], vLam + 2 * n, prev, W[n][tau], W[n][tau])
                prev = W[n][tau]
            ep += flat(spread(blk, pend, 8, 30))
            for k in range(8):
                ep += I(f"v_cvt_pk_bf16_f32 v{vPk+k}, v{W[n][2*k]}, v{W[n][2*k+1]}")
                ep += I(f"v_cvt_pk_bf16_f32 v{vPk+8+k}, -v{W[n][2*k]+1}, -v{W[n][2*k+1]+1}")
            for part in range(2):
                for h in range(2):
                    r = vPk + 8 * part + 4 * h
                    ep += I(f"ds_write_b128 v{a0}, v[{r}:{r+3}] offset:{(2*n+part)*BLK + 16*h}")
            for tt_ in range(4):
                for part in range(2):
                    r = vTr + 4 * tt_ + 2 * part
                    ep += I(f"ds_read_b64_tr_b16 {p2(r)}, v{a1} offset:{(2*n+part)*BLK + 32*tt_}")
            pend = []
            for tt_ in range(4):
                r = vTr + 4 * tt_
                x = I(f"buffer_store_dwordx4 v[{r}:{r+3}], v{vRl}, {q4(sWS)}, s{sHS} offen offset:{1024*tt_} sc1")
                hid_st += x
                pend.append(x + (I(f"s_add_u32 s{sHS}, s{sHS}, 4096") if tt_ == 3 and n < 2 else []))
        ep += flat(pend)
        nw = max(0, len(wq) - 6)
        P += spread(ep, wq[:nw])
        P += wq[nw:]
        wq = []
        V.put(tt, 2); V.put(vE, 6); V.put(vTm, 2); V.put(vNb, 18); V.put(vWt, 18); V.put(vL16, 6); V.put(vPx, 6)
        V.put(vTb); V.put(vG, 24); [V.put(r) for r in vGa + vGt]; V.put(vLam, 6)
    P += stamp()
    V.put(vA, 96); V.put(vCS, 24)
    assert all(r in V.free for r in range(18, 256)), sorted(set(range(18, 256)) - V.free)
    V.free = set(range(18, 32))
    P += I(f"""
s_lshl_b32 s{sT0}, s{sL}, 7
s_add_u32 s{sT0}, s{sT0}, {WS_F1}
v_lshlrev_b32 v{a0}, 2, v0
v_mov_b32 v{a1}, {OOB}
v_cmp_gt_u32 vcc, 32, v0
v_cndmask_b32 v{a0}, v{a1}, v{a0}, vcc
""")
    P += [Wait(hid_st)] + I("s_barrier")
    f1 = I(f"buffer_store_dword v{vTag}, v{a0}, {q4(sWS)}, s{sT0} offen sc1")
    P += f1
    P += stamp()

    vAb, vAF, vAY = 32, 96, 176
    vAo = [V.get() for _ in range(4)]
    vFl = [V.get(), V.get()]
    vRW = [None] + [V.get() for _ in range(3)]
    P += I(f"""
s_lshr_b32 s{sT1}, s{sRB2}, 1
s_lshl_b32 s{sT1}, s{sT1}, 7
s_add_u32 s{sT1}, s{sT1}, {WS_F1}
v_min_u32 v{a1}, 8, v{vC}
v_lshl_add_u32 v{vFl[0]}, v{a1}, 11, s{sT1}
v_max_u32 v{a1}, 9, v{vC}
v_lshl_add_u32 v{vFl[1]}, v{a1}, 11, s{sT1}
""")
    for u in range(4):
        P += I(f"""
s_add_u32 s{sT0}, s{sWv}, {u}
s_and_b32 s{sT0}, s{sT0}, 3
s_lshl_b32 s{sT1}, s{sT0}, 10
v_add_u32 v{vAo[u]}, s{sT1}, v{vRl}
""")
        if u:
            P += I(f"""
s_mul_i32 s{sT1}, s{sT0}, 15360
s_add_u32 s{sT1}, s{sT1}, {(u-1)*5120}
v_add_u32 v{vRW[u]}, s{sT1}, v{vRl}
""")
    vRR = V.get()
    P += I(f"s_mul_i32 s{sT1}, s{sWv}, 15360\nv_add_u32 v{vRR}, s{sT1}, v{vRl}")

    def fpoll(k):
        return f"buffer_load_dword v{vPo+k}, v{vFl[k]}, {q4(sWS)}, 0 offen sc1", f"v_cmp_ne_u32 vcc, s{sTAG}, v{vPo+k}"
    P += [Wait(f1)]
    ld, ck = fpoll(0)
    P += I(ld) + I(ck) + poll_tail("f1a", ld, ck)
    P += stamp()

    def aload(i):
        b = vAb + 16 * (i % 4)
        h = I(f"s_add_u32 s{sAo}, s{sHA}, {i*4*4096}")
        if i == 13:
            h += I(f"s_cmp_ge_u32 s{sWv}, 2\ns_cselect_b32 s{sAo}, {OOB}, s{sAo}")
        return [(h if u == 0 else []) + I(f"buffer_load_dwordx4 v[{b+4*u}:{b+4*u+3}], v{vAo[u]}, {q4(sWS)}, s{sAo} offen sc1") for u in range(4)]
    for i in range(3):
        P += aload(i)
    fill = [[] for _ in range(24)]
    head = [[] for _ in range(24)]
    pre_ = [[] for _ in range(24)]
    for i in range(24):
        g = []
        if i + 3 < 24:
            g += aload(i + 3)
        if i >= 1 and i + 11 < 24:
            g += WL[i + 11]
        fill[i] += g
    ld, ck = fpoll(1)
    fill[9] += [I(ld)]
    pre_[11] += I(ck) + poll_tail("f1b", ld, ck) + stamp()

    def accf(base, u, nt):
        return base + 20 * u + 4 * nt
    wr = [I(f"ds_write_b128 v{vRW[u]}, v[{accf(vAF,u,nt)}:{accf(vAF,u,nt)+3}] offset:{1024*nt}") for u in range(1, 4) for nt in range(5)]
    fill[14] += wr[:8]
    fill[15] += wr[8:]
    pre_[16] += [Wait(lgkm0=True)] + I("s_barrier")
    fill[16] += [I(f"ds_read_b128 v[{accf(vAF,u,nt)}:{accf(vAF,u,nt)+3}], v{vRR} offset:{(u-1)*5120 + 1024*nt}") for u in range(1, 4) for nt in range(5)]
    vXr = [vPo, vPo + 2, V.get(2, 2), V.get(2, 2)]
    ex = []
    G = lambda nt, i: accf(vAF, 0, nt) + i
    for nt in range(5):
        for i in range(4):
            ex.append(I(f"v_add_f32 v{G(nt,i)}, v{G(nt,i)}, v{accf(vAF,1,nt)+i}"))
            ex.append(I(f"v_add_f32 v{accf(vAF,2,nt)+i}, v{accf(vAF,2,nt)+i}, v{accf(vAF,3,nt)+i}"))
    for nt in range(5):
        for i in range(4):
            ex.append(I(f"v_add_f32 v{G(nt,i)}, v{G(nt,i)}, v{accf(vAF,2,nt)+i}"))
    fill[17] += ex[:30]
    fill[18] += ex[30:]
    fr = vAF + 20
    vXs, vSt2, vB2, vDk = fr, fr + 4, fr + 12, fr + 20
    vXf = fr + 28
    tq = fr + 48
    head[13] += I(f"""
s_lshl_b32 s{sT0}, s{sRB2}, 6
s_lshl_b32 s{sT1}, s{sWv}, 4
s_add_u32 s{sT0}, s{sT0}, s{sT1}
v_lshl_add_u32 v{a0}, v{vQ}, 2, s{sT0}
s_mul_i32 s{sT2}, s{sCT2}, 160
v_mul_u32_u24 v{a1}, 1280, v{a0}
v_lshl_add_u32 v{t0}, v{vC}, 3, v{a1}
v_lshl_add_u32 v{t1}, v{vC}, 1, v{a1}
v_lshrrev_b32 v{a1}, 3, v{a0}
v_and_b32 v{a2}, 7, v{a0}
v_lshlrev_b32 v{a1}, 7, v{a1}
v_lshl_add_u32 v{a1}, v{a2}, 3, v{a1}
v_add_u32 v{a1}, {WS_STATS}, v{a1}
v_lshlrev_b32 v{t2}, 3, v{vC}
v_lshlrev_b32 v{t3}, 1, v{vC}
""")
    fill[14] += [I(f"buffer_load_dwordx2 v[{vXr[i]}:{vXr[i]+1}], v{t0}, {q4(sX)}, s{sT2} offen offset:{1280*i}") for i in range(4)]
    l2 = [I(f"buffer_load_ushort v{vXs+i}, v{t1}, {q4(sX)}, s{sT2} offen offset:{1280*i+128}") for i in range(4)]
    l2 += [I(f"buffer_load_dwordx4 v[{vSt2+4*k}:{vSt2+4*k+3}], v{a1}, {q4(sWS)}, 0 offen offset:{16*k} sc1") for k in range(2)]
    l2 += [srd(sT, 30, 1280) + I(f"buffer_load_dwordx2 v[{vB2}:{vB2+1}], v{t2}, {q4(sT)}, s{sT2} offen"),
           I(f"buffer_load_ushort v{vB2+2}, v{t3}, {q4(sT)}, s{sT2} offen offset:128"),
           srd(sR, 20, 1280) + I(f"buffer_load_dwordx2 v[{vDk}:{vDk+1}], v{t2}, {q4(sR)}, s{sT2} offen"),
           I(f"buffer_load_ushort v{vDk+2}, v{t3}, {q4(sR)}, s{sT2} offen offset:128")]
    fill[19] += l2
    ex = []

    def unpack5(dst, raw2, raw1):
        return [I(f"v_lshlrev_b32 v{dst[0]}, 16, v{raw2}"), I(f"v_and_b32 v{dst[1]}, 0xffff0000, v{raw2}"),
                I(f"v_lshlrev_b32 v{dst[2]}, 16, v{raw2+1}"), I(f"v_and_b32 v{dst[3]}, 0xffff0000, v{raw2+1}"),
                I(f"v_lshlrev_b32 v{dst[4]}, 16, v{raw1}")]
    ex += unpack5([vB2 + 3 + k for k in range(5)], vB2, vB2 + 2)
    ex += unpack5([vDk + 3 + k for k in range(5)], vDk, vDk + 2)
    XF = lambda nt, i: vXf + 4 * nt + i
    for i in range(4):
        ex += unpack5([XF(nt, i) for nt in range(5)], vXr[i], vXs + i)
    for nt in range(5):
        for i in range(4):
            ex.append(I(f"v_add_f32 v{G(nt,i)}, v{G(nt,i)}, v{vB2+3+nt}"))
        for i in range(4):
            ex.append(I(f"v_mul_f32 v{tq+i}, {f32(-math.log2(math.e))}, v{G(nt,i)}"))
        for i in range(4):
            ex.append(I(f"v_exp_f32 v{tq+i}, v{tq+i}"))
        for i in range(4):
            ex.append(I(f"v_fma_f32 v{tq+4+i}, v{XF(nt,i)}, v{vSt2+2*i}, -v{vSt2+2*i+1}"))
        for i in range(4):
            ex.append(I(f"v_add_f32 v{tq+i}, 1.0, v{tq+i}"))
        for i in range(4):
            ex.append(I(f"v_rcp_f32 v{tq+i}, v{tq+i}"))
        for i in range(4):
            ex.append(I(f"v_mul_f32 v{tq+4+i}, v{tq+4+i}, v{vDk+3+nt}"))
        for i in range(4):
            ex.append(I(f"v_mul_f32 v{G(nt,i)}, v{G(nt,i)}, v{tq+i}"))
        for i in range(4):
            ex.append(I(f"v_fmac_f32 v{XF(nt,i)}, v{tq+4+i}, v{G(nt,i)}"))
    k3 = len(ex) // 3
    fill[21] += ex[:k3]
    fill[22] += ex[k3:2 * k3]
    fill[23] += ex[2 * k3:]

    for i in range(24):
        base = vAF if i < 14 else vAY
        first = i in (0, 14)
        mf = []
        for u in range(4):
            for nt in range(5):
                d = vr(accf(base, u, nt), 4)
                b = 20 * (i % 12) + 4 * nt
                mf.append(I(f"v_mfma_f32_16x16x32_bf16 {d}, v[{vAb+16*(i%4)+4*u}:{vAb+16*(i%4)+4*u+3}], a[{b}:{b+3}], {'0' if first else d}"))
        body = spread(mf, fill[i], 0, 20)
        P += [pre_[i], body[0], head[i], body[1:]]
    P += stamp()
    for u in range(1, 4):
        P += I(f"v_add_u32 v{vRW[u]}, 61440, v{vRW[u]}")
    P += I(f"v_add_u32 v{vRR}, 61440, v{vRR}")
    for u in range(1, 4):
        for nt in range(5):
            P += I(f"ds_write_b128 v{vRW[u]}, v[{accf(vAY,u,nt)}:{accf(vAY,u,nt)+3}] offset:{1024*nt}")
    P += I(f"""
v_mul_u32_u24 v{a1}, 2560, v{a0}
v_lshl_add_u32 v{t0}, v{vC}, 4, v{a1}
v_lshl_add_u32 v{t1}, v{vC}, 2, v{a1}
v_add_u32 v{t2}, 5120, v{t0}
v_add_u32 v{t3}, 5120, v{t1}
s_mul_i32 s{sT2}, s{sCT2}, 320
""")
    P += [Wait(lgkm0=True)] + I("s_barrier")
    for nt in range(5):
        for u in range(1, 4):
            P += I(f"ds_read_b128 v[{accf(vAY,u,nt)}:{accf(vAY,u,nt)+3}], v{vRR} offset:{(u-1)*5120 + 1024*nt}")
    p2 = lambda r: f"v[{r}:{r+1}]"
    vO = vAb
    for nt in range(5):
        for h in range(2):
            y = lambda u: p2(accf(vAY, u, nt) + 2 * h)
            P += I(f"v_pk_add_f32 {y(0)}, {y(0)}, {y(1)}\nv_pk_add_f32 {y(2)}, {y(2)}, {y(3)}\nv_pk_add_f32 {y(0)}, {y(0)}, {y(2)}")
        for i in range(4):
            d = vO + 4 * i + nt if nt < 4 else vO + 16 + i
            P += I(f"v_fma_f32 v{d}, v{accf(vAY,0,nt)+i}, v{G(nt,i)}, v{XF(nt,i)}")
        if nt == 3:
            for i in range(4):
                P += I(f"buffer_store_dwordx4 v[{vO+4*i}:{vO+4*i+3}], v{t0 if i < 2 else t2}, {q4(sO)}, s{sT2} offen offset:{2560*(i&1)} {cfg.out_aux}")
    for i in range(4):
        P += I(f"buffer_store_dword v{vO+16+i}, v{t1 if i < 2 else t3}, {q4(sO)}, s{sT2} offen offset:{2560*(i&1)+256} {cfg.out_aux}")
    if cfg.diag:
        P += stamp() + [Wait(vm0=True)] + stamp()
        P += I(f"v_mov_b32 v{a0}, 0")
        for k in range(nstamp[0]):
            P += I(f"v_writelane_b32 v{a0}, s{76+2*k}, {k}")
        P += I(f"""
s_getreg_b32 s{sT0}, hwreg(HW_REG_XCC_ID)
v_writelane_b32 v{a0}, s{sT0}, 30
v_writelane_b32 v{a0}, s{sL}, 31
s_lshl_b32 s{sT0}, s2, 10
s_add_u32 s{sT0}, s{sT0}, {WS_DBG}
v_lshlrev_b32 v{a1}, 2, v0
buffer_store_dword v{a0}, v{a1}, {q4(sWS)}, s{sT0} offen
""")
    P += I("s_endpgm")
    return P


def generate(cfg):
    hdr = open("cdna_kernels/" + NAME + ".s.ref").read().split("; Override launch")[0]
    entry = I(f"""
s_load_dwordx16 s[4:19], s[0:1], 0
s_load_dwordx2 s[20:21], s[0:1], 64
s_load_dwordx8 s[24:31], s[0:1], 80
s_load_dwordx2 s[32:33], s[0:1], 112
s_load_dwordx2 s[34:35], s[0:1], 128
""")
    ids = f"""    s_cmp_ge_u32 s2, 256
    s_cbranch_scc1 L_exit
    s_bfe_u32 s3, s2, 0x30003
    s_lshl_b32 s22, s2, 1
    s_and_b32 s22, s22, 8
    s_add_u32 s3, s3, s22
    s_lshr_b32 s22, s2, 6
    s_lshl_b32 s22, s22, 2
    s_and_b32 s23, s2, 3
    s_add_u32 s22, s22, s23
    s_lshl_b32 s23, s22, 4
    s_add_u32 s23, s23, s3
    s_cmp_ge_u32 s22, 9
    s_cbranch_scc1 L_S_start
"""
    st = {}
    body = ids
    for ssm in (False, True):
        T = "S" if ssm else "F"
        body += f"L_{T}_start:\n" + finalize(entry + build_path(ssm, cfg), st) + f"L_{T}_end:\n"
        if not ssm:
            body += "L_exit:\n    s_endpgm\n    .p2align 6\n"
    txt = f"""{hdr}; @launch grid=(256,1,1) block=(256,1,1) lds={LDS_BYTES}
.amdgcn_target "amdgcn-amd-amdhsa--gfx950"
.text
.globl {NAME}_kernel
.p2align 8
.type {NAME}_kernel,@function
{NAME}_kernel:
{body}
.section .rodata,"a"
.p2align 6
.amdhsa_kernel {NAME}_kernel
  .amdhsa_next_free_vgpr 512
  .amdhsa_next_free_sgpr 102
  .amdhsa_accum_offset 256
  .amdhsa_group_segment_fixed_size 0
  .amdhsa_kernarg_size 136
  .amdhsa_user_sgpr_count 2
  .amdhsa_user_sgpr_kernarg_segment_ptr 1
  .amdhsa_system_sgpr_workgroup_id_x 1
  .amdhsa_float_denorm_mode_32 3
.end_amdhsa_kernel
"""
    return txt, st


if __name__ == "__main__":
    cfg = Cfg()
    out = None
    for a in sys.argv[1:]:
        if "=" in a:
            k, v = a.split("=", 1)
            cur = getattr(cfg, k)
            setattr(cfg, k, type(cur)(int(v)) if isinstance(cur, (bool, int)) else v)
        else:
            out = a
    txt, st = generate(cfg)
    open(out or "cdna_kernels/" + NAME + ".s", "w").write(txt)
    print("generated", st, "lines", txt.count("\n"))
```

```python
import sys, struct, math
from kgen import *

NAME = "recurrent_scan__ssm_conv_s5__dense_activation_gelu__prompt"

WS_EPOCH = 0
WS_F0 = 0x1000
WS_F1 = 0x10000
WS_STATS = 0x30000
WS_EG = 0x60000
WS_WP = 0x100000
WS_HID = 0x500000
WS_DBG = 0x1200000
WS_SIZE = 0x1300000
OOB = 0x70000000

L_X = 0
L_W = 49152
L_CST = 122880
L_TAB = 143360
L_ST = 155648
L_SEG = 156672
LDS_BYTES = 163840


def f32(x):
    return "0x%08x" % struct.unpack("<I", struct.pack("<f", x))[0]


class Cfg:
    diag = 0
    rel_ld = 0
    rel_proc = 3
    f0_flag = 7
    f0_poll = 13
    out_aux = ""
    spin = 200000


def build_path(ssm, cfg):
    T = "S" if ssm else "F"
    V = Alloc("v", 1, 56)
    S = Alloc("s", 60, 84)
    P = []
    nstamp = [0]

    names = []

    def stamp(name="", level=1):
        if cfg.diag < level:
            return []
        k = nstamp[0]
        nstamp[0] += 1
        names.append(name)
        assert k < 30
        o = []
        if k == 0:
            o += I(f"v_mov_b32 v{vDbg}, 0")
        if k >= 1:
            b = 84 + 4 * ((k - 1) % 2)
            o += I(f"v_writelane_b32 v{vDbg}, s{b}, {2*k-2}\nv_writelane_b32 v{vDbg}, s{b+2}, {2*k-1}")
        b = 84 + 4 * (k % 2)
        return o + I(f"s_memrealtime s[{b}:{b+1}]\ns_memtime s[{b+2}:{b+3}]")

    sX, sW, sWS, sR, sT, sO = 36, 40, 44, 48, 52, 56

    def srd(d, ptr, size):
        return I(f"""s_mov_b32 s{d}, s{ptr}
s_mov_b32 s{d+1}, s{ptr+1}
s_mov_b32 s{d+2}, {size}
s_mov_b32 s{d+3}, 0x20000""")

    def q4(b):
        return f"s[{b}:{b+3}]"

    sRB1, sCT, sL = 3, 22, 23
    sWv, sKK, sSX, sSW, sM0X, sM0W, sTAG, sT0, sT1, sT2 = [S.get() for _ in range(10)]
    vL, vC, vQ = V.get(), V.get(), V.get()
    t0, t1, t2, t3 = [V.get() for _ in range(4)]
    vPo = V.get(4, 2)
    a0, a1, a2 = V.get(), V.get(), V.get()
    vRl, vRl2, vTag = V.get(), V.get(), V.get()
    vDbg = V.get()
    assert vDbg == 18

    P += stamp("start")
    P += I(f"""
v_lshrrev_b32 v{t0}, 6, v0
v_and_b32 v{vL}, 63, v0
v_readfirstlane_b32 s{sWv}, v{t0}
v_and_b32 v{vC}, 15, v0
v_lshrrev_b32 v{vQ}, 4, v{vL}
""")
    P += I(f"""
s_and_b32 s{sT0}, s{sCT}, 3
s_lshl_b32 s{sT0}, s{sT0}, 2
s_lshr_b32 s{sT1}, s{sCT}, 2
s_add_u32 s{sT0}, s{sT0}, s{sT1}
s_add_u32 s{sT0}, s{sT0}, s{sRB1}
s_mul_i32 s{sT1}, s{sT0}, 205
s_lshr_b32 s{sT1}, s{sT1}, 11
s_mul_i32 s{sT1}, s{sT1}, 10
s_sub_u32 s{sKK}, s{sT0}, s{sT1}
s_lshl_b32 s{sM0X}, s{sWv}, 12
s_mul_i32 s{sM0W}, s{sWv}, 6144
s_add_u32 s{sM0W}, s{sM0W}, {L_W}
""")
    vSt = 160
    vStA = 170
    P += I(f"""
s_lshl_b32 s{sT0}, s{sRB1}, 7
s_lshl_b32 s{sT1}, s{sCT}, 3
s_add_u32 s{sT0}, s{sT0}, s{sT1}
s_lshl_b32 s{sT1}, s{sWv}, 1
s_add_u32 s{sT0}, s{sT0}, s{sT1}
v_lshrrev_b32 v{t0}, 5, v{vL}
v_add_u32 v{vStA}, s{sT0}, v{t0}
v_and_b32 v{t1}, 31, v{vL}
v_mul_u32_u24 v{t0}, 1280, v{vStA}
v_lshl_add_u32 v{t2}, v{t1}, 4, v{t0}
v_lshl_add_u32 v{t3}, v{t1}, 3, v{t0}
""")
    vXo = [vRl2] + [V.get() for _ in range(3)]
    vWo = [V.get() for _ in range(6)]
    pre = []
    pre += I(f"""
v_lshrrev_b32 v{a0}, 3, v{vL}
v_and_b32 v{a1}, 7, v{vL}
s_lshl_b32 s{sT0}, s{sRB1}, 7
""")
    for j in range(4):
        r = vXo[j]
        if not ssm:
            pre += I(f"""
s_lshl_b32 s{sT1}, s{sWv}, 5
s_add_u32 s{sT1}, s{sT1}, s{sT0}
s_add_u32 s{sT1}, s{sT1}, {8*j}
v_add_u32 v{r}, s{sT1}, v{a0}
""")
        else:
            pre += I(f"""
s_lshr_b32 s{sT1}, s{sWv}, 1
s_lshl_b32 s{sT1}, s{sT1}, 6
s_and_b32 s{sT2}, s{sWv}, 1
s_lshl_b32 s{sT2}, s{sT2}, 3
s_add_u32 s{sT1}, s{sT1}, s{sT2}
s_add_u32 s{sT1}, s{sT1}, s{sT0}
s_add_u32 s{sT1}, s{sT1}, {32*(j&1) + 4*(j>>1)}
v_lshrrev_b32 v{a2}, 5, v{vL}
v_and_b32 v{r}, 3, v{a0}
v_lshl_add_u32 v{r}, v{a2}, 4, v{r}
v_add_u32 v{r}, s{sT1}, v{r}
""")
        pre += I(f"""
v_mul_u32_u24 v{r}, 1280, v{r}
v_lshrrev_b32 v{a2}, 1, v{a0}
v_xor_b32 v{a2}, {4*(j&1)}, v{a2}
v_xor_b32 v{a2}, v{a1}, v{a2}
v_lshl_add_u32 v{r}, v{a2}, 4, v{r}
""")
        if j:
            pre += I(f"v_subrev_u32 v{r}, {1024*j}, v{r}")
    sCH0 = S.get()
    if ssm:
        pre += I(f"""
s_sub_u32 s{sT1}, s{sCT}, 9
s_mul_i32 s{sCH0}, s{sT1}, 96
s_min_u32 s{sCH0}, s{sCH0}, 544
s_lshr_b32 s{sT1}, s{sWv}, 1
s_mul_i32 s{sT1}, s{sT1}, 48
s_add_u32 s{sT1}, s{sT1}, s{sCH0}
""")
        for j in range(6):
            r = vWo[j]
            pre += I(f"""
v_add_u32 v{r}, s{sT1}, v{a0}
v_mul_u32_u24 v{r}, 1280, v{r}
v_lshrrev_b32 v{a2}, 1, v{a0}
v_xor_b32 v{a2}, {4*(j&1)}, v{a2}
v_xor_b32 v{a2}, v{a1}, v{a2}
v_lshl_add_u32 v{r}, v{a2}, 4, v{r}
""")
            if j:
                pre += I(f"v_add_u32 v{r}, {8*j*1280 - 1024*(j%3)}, v{r}")
    else:
        pre += I(f"""
s_mul_i32 s{sT1}, s{sCT}, 384
s_mul_i32 s{sT2}, s{sWv}, {16*3456}
s_add_u32 s{sT1}, s{sT1}, s{sT2}
""")
        for j in range(6):
            r = vWo[j]
            pre += I(f"""
v_add_u32 v{a0}, {64*j}, v{vL}
v_mul_u32_u24 v{a1}, 2731, v{a0}
v_lshrrev_b32 v{a1}, 16, v{a1}
v_mul_u32_u24 v{a2}, 24, v{a1}
v_sub_u32 v{a0}, v{a0}, v{a2}
v_and_b32 v{a2}, 2, v{a1}
v_xor_b32 v{a0}, v{a0}, v{a2}
v_lshrrev_b32 v{a2}, 1, v{a1}
v_and_b32 v{a2}, 4, v{a2}
v_xor_b32 v{a0}, v{a0}, v{a2}
v_mul_u32_u24 v{r}, 3456, v{a1}
v_lshl_add_u32 v{r}, v{a0}, 4, v{r}
v_add_u32 v{r}, s{sT1}, v{r}
""")
            if j % 3:
                pre += I(f"v_subrev_u32 v{r}, {1024*(j%3)}, v{r}")
    P += pre
    P += srd(sX, 4, 2048 * 1280)
    P += I(f"""
buffer_load_dwordx4 v[{vSt}:{vSt+3}], v{t2}, {q4(sX)}, 0 offen
buffer_load_dwordx4 v[{vSt+4}:{vSt+7}], v{t2}, {q4(sX)}, 0 offen offset:512
buffer_load_dwordx2 v[{vSt+8}:{vSt+9}], v{t3}, {q4(sX)}, 0 offen offset:1024
s_load_dword s{sTAG}, s[34:35], {WS_EPOCH}
""")
    if ssm:
        P += I(f"""
s_bitcmp1_b32 s{sWv}, 0
s_cselect_b32 s{sW}, s12, s10
s_cselect_b32 s{sW+1}, s13, s11
s_mov_b32 s{sW+2}, {640*1280}
s_mov_b32 s{sW+3}, 0x20000
s_cselect_b32 s{sR}, s16, s14
s_cselect_b32 s{sR+1}, s17, s15
s_mov_b32 s{sR+2}, {640*1280}
s_mov_b32 s{sR+3}, 0x20000
""")
        vPar = 200
        P += I(f"""
s_and_b32 s{sT1}, s{sWv}, 1
s_mul_i32 s{sT1}, s{sT1}, 48
s_add_u32 s{sT1}, s{sT1}, s{sCH0}
v_add_u32 v{a0}, s{sT1}, v{vC}
v_lshlrev_b32 v{a0}, 1, v{a0}
""")
        for k, ptr in enumerate((6, 8, 18)):
            P += srd(sT, ptr, 1280)
            for n in range(3):
                P += I(f"buffer_load_ushort v{vPar+3*k+n}, v{a0}, {q4(sT)}, 0 offen offset:{32*n}")
    else:
        P += srd(sW, 24, 640 * 3456)
        P += srd(sR, 28, 1728 * 1280)
    P += srd(sWS, 34, WS_SIZE)
    P += srd(sO, 32, 2048 * 2560)

    WSTEP = 128 if ssm else 64 * 3456

    def dma(i):
        slot = i % 3
        g = []
        head = I(f"""s_lshl_b32 s{sSX}, s{sKK}, 7
s_add_u32 m0, s{sM0X}, {slot*16384}""")
        if not ssm:
            head = I(f"s_mul_i32 s{sSW}, s{sKK}, {WSTEP}") + head
        sw = sSX if ssm else sSW
        for j in range(4):
            x = I(f"buffer_load_dwordx4 v{vXo[j]}, {q4(sX)}, s{sSX} offen offset:{1024*j} lds")
            g.append((head if j == 0 else []) + x)
        for j in range(6):
            h = []
            if j % 3 == 0:
                h = I(f"s_add_u32 m0, s{sM0W}, {slot*24576 + 1024*j}")
                if j == 0:
                    h += I(f"s_add_u32 s{sKK}, s{sKK}, 1")
                else:
                    h += I(f"s_cmp_eq_u32 s{sKK}, 10\ns_cselect_b32 s{sKK}, 0, s{sKK}")
            g.append(h + I(f"buffer_load_dwordx4 v{vWo[j]}, {q4(sW)}, s{sw} offen offset:{1024*(j%3)} lds"))
        return g

    D = [dma(i) for i in range(10)]
    P += D[0]
    P += I(f"""
v_lshlrev_b32 v{a0}, 21, v{vL}
v_add_u32 v{a0}, 0xff00, v{a0}
buffer_load_dword a255, v{a0}, {q4(sWS)}, 0 offen
buffer_load_dword a255, v{a0}, {q4(sO)}, 0 offen
s_getpc_b64 s[{sT}:{sT+1}]
L_{T}_pc:
s_mov_b32 s{sT+2}, L_{T}_end-L_{T}_pc
s_mov_b32 s{sT+3}, 0x20000
v_lshlrev_b32 v{a0}, 7, v0
buffer_load_dword a255, v{a0}, {q4(sT)}, 0 offen
""")
    vU = 172
    st = []
    for k in range(10):
        st += I(f"v_lshlrev_b32 v{vU+2*k}, 16, v{vSt+k}\nv_and_b32 v{vU+2*k+1}, 0xffff0000, v{vSt+k}")
    acc = vSt
    st += I(f"v_pk_add_f32 v[{acc}:{acc+1}], v[{vU}:{vU+1}], v[{vU+2}:{vU+3}]")
    for k in range(2, 10):
        st += I(f"v_pk_add_f32 v[{acc}:{acc+1}], v[{acc}:{acc+1}], v[{vU+2*k}:{vU+2*k+1}]")

    def red32(r, tmp):
        o = []
        for sh in (8, 4, 2, 1):
            o += I(f"v_add_f32_dpp v{r}, v{r}, v{r} row_ror:{sh} row_mask:0xf bank_mask:0xf")
        o += I(f"v_mov_b32 v{tmp}, v{r}\nv_permlane16_swap_b32 v{r}, v{tmp}\nv_add_f32 v{r}, v{r}, v{tmp}")
        return o
    m = vSt + 2
    st += I(f"v_add_f32 v{m}, v{acc}, v{acc+1}")
    st += red32(m, m + 1)
    st += I(f"v_mul_f32 v{m}, {f32(1/640)}, v{m}")
    for k in range(10):
        st += I(f"v_pk_add_f32 v[{vU+2*k}:{vU+2*k+1}], v[{vU+2*k}:{vU+2*k+1}], v[{m}:{m+1}] op_sel_hi:[1,0] neg_lo:[0,1] neg_hi:[0,1]")
    st += I(f"v_pk_mul_f32 v[{acc}:{acc+1}], v[{vU}:{vU+1}], v[{vU}:{vU+1}]")
    for k in range(1, 10):
        st += I(f"v_pk_fma_f32 v[{acc}:{acc+1}], v[{vU+2*k}:{vU+2*k+1}], v[{vU+2*k}:{vU+2*k+1}], v[{acc}:{acc+1}]")
    va = vSt + 4
    st += I(f"v_add_f32 v{va}, v{acc}, v{acc+1}")
    st += red32(va, va + 1)

    def rbf(r):
        return I(f"v_cvt_pk_bf16_f32 v{r}, v{r}, v{r}\nv_lshlrev_b32 v{r}, 16, v{r}")
    st += I(f"v_mul_f32 v{va}, {f32(1/640)}, v{va}")
    st += rbf(va) + rbf(m)
    st += I(f"v_add_f32 v{va}, {f32(1e-5)}, v{va}")
    st += rbf(va)
    st += I(f"v_sqrt_f32 v{va}, v{va}")
    st += rbf(va)
    st += I(f"""v_rcp_f32 v{va}, v{va}
v_lshrrev_b32 v{t0}, 3, v{vStA}
v_and_b32 v{t2}, 7, v{vStA}
v_mul_f32 v{va+1}, v{m}, v{va}
v_lshlrev_b32 v{t0}, 7, v{t0}
v_lshl_add_u32 v{t0}, v{t2}, 3, v{t0}
v_add_u32 v{t0}, {WS_STATS}, v{t0}
v_cmp_eq_u32 vcc, 0, v{t1}
v_mov_b32 v{t2}, {OOB}
v_cndmask_b32 v{t0}, v{t2}, v{t0}, vcc""")
    st_store = I(f"buffer_store_dwordx2 v[{va}:{va+1}], v{t0}, {q4(sWS)}, 0 offen sc1")
    st += st_store
    st += I(f"s_mul_i32 s{sTAG}, s{sTAG}, 1664525\ns_add_u32 s{sTAG}, s{sTAG}, 1013904223")

    vbX = [V.get(), V.get()]
    st += I(f"""
s_lshr_b32 s{sT0}, s{sWv}, 1
s_lshl_b32 s{sT0}, s{sT0}, 13
v_lshrrev_b32 v{a0}, 1, v{vC}
v_xor_b32 v{a0}, v{vQ}, v{a0}
v_lshlrev_b32 v{a1}, 7, v{vC}
v_lshl_add_u32 v{a1}, v{a0}, 4, v{a1}
v_add_u32 v{vbX[0]}, s{sT0}, v{a1}
v_xor_b32 v{vbX[1]}, 64, v{vbX[0]}
""")
    if ssm:
        vbW = [V.get(), V.get()]
        st += I(f"""
s_and_b32 s{sT0}, s{sWv}, 1
s_mul_i32 s{sT0}, s{sT0}, 12288
s_add_u32 s{sT0}, s{sT0}, {L_W}
v_add_u32 v{vbW[0]}, s{sT0}, v{a1}
v_xor_b32 v{vbW[1]}, 64, v{vbW[0]}
""")
    else:
        vbW = [V.get() for _ in range(6)]
        st += I(f"""
v_bfe_u32 v{a0}, v{vL}, 2, 2
v_lshl_add_u32 v{a1}, v{vQ}, 3, v{a0}
v_mul_u32_u24 v{a1}, 384, v{a1}
v_and_b32 v{a2}, 1, v{vL}
v_lshl_add_u32 v{a1}, v{a2}, 3, v{a1}
v_add_u32 v{a1}, {L_W}, v{a1}
v_and_b32 v{a0}, 2, v{a0}
v_and_b32 v{a2}, 1, v{vQ}
v_lshl_or_b32 v{a0}, v{a2}, 2, v{a0}
v_bfe_u32 v{a2}, v{vL}, 1, 1
s_and_b32 s{sT0}, s{sWv}, 1
s_mul_i32 s{sT0}, s{sT0}, 12
v_add_u32 v{a2}, s{sT0}, v{a2}
""")
        for ft in range(6):
            st += I(f"""
v_add_u32 v{vbW[ft]}, {2*ft}, v{a2}
v_xor_b32 v{vbW[ft]}, v{vbW[ft]}, v{a0}
v_lshl_add_u32 v{vbW[ft]}, v{vbW[ft]}, 4, v{a1}
""")
    if ssm:
        A, B = vU, vU + 3
        n1, n2, wa, wb = vU + 6, vU + 7, vU + 8, vU + 9
        o = vU + 10
        u0, u1, u2 = vU + 12, vU + 13, vU + 14
        cf = vU + 16
        tb = []
        tb += I(f"""
s_lshr_b32 s{sT0}, s{sWv}, 1
s_lshl_b32 s{sT0}, s{sT0}, 2
v_add_u32 v{u0}, s{sT0}, v{vQ}
v_lshlrev_b32 v{n1}, 8, v{u0}
v_cvt_f32_u32 v{n1}, v{n1}
v_subrev_u32 v{u1}, 1, v{u0}
v_lshlrev_b32 v{u1}, 4, v{u1}
v_add_u32 v{u2}, 1, v{u0}
v_cmp_gt_u32 vcc, 2, v{u0}
v_cndmask_b32 v{n2}, v{u1}, v{u2}, vcc
v_cvt_f32_u32 v{n2}, v{n2}
s_and_b32 s{sT1}, s{sWv}, 1
s_mul_i32 s{sT1}, s{sT1}, 384
s_add_u32 s{sT1}, s{sT1}, {L_TAB}
v_mul_u32_u24 v{wa}, 768, v{u0}
v_lshl_add_u32 v{u1}, v{vC}, 3, s{sT1}
v_add_u32 v{wa}, v{wa}, v{u1}
v_add_u32 v{wb}, {14*768}, v{u1}
v_mov_b32 v{u2}, {L_SEG}
v_cmp_eq_u32 vcc, 0, v{u0}
v_cndmask_b32 v{wb}, v{u2}, v{wb}, vcc
v_add_u32 v{t3}, {8*768}, v{wa}
v_cmp_eq_u32 vcc, 6, v{u0}
v_cndmask_b32 v{t3}, v{t3}, v{u2}, vcc
v_cmp_gt_u32 vcc, 6, v{u0}
""")
        for n in range(3):
            lre, lim, ldt = vPar + n, vPar + 3 + n, vPar + 6 + n
            tb += I(f"""
v_lshlrev_b32 v{lre}, 16, v{lre}
v_lshlrev_b32 v{lim}, 16, v{lim}
v_lshlrev_b32 v{ldt}, 16, v{ldt}
v_mul_f32 v{ldt}, {f32(math.log2(math.e))}, v{ldt}
v_exp_f32 v{ldt}, v{ldt}
""") + rbf(ldt) + I(f"""
v_mul_f32 v{A+n}, v{ldt}, v{lre}
v_mul_f32 v{B+n}, v{ldt}, v{lim}
v_mul_f32 v{A+n}, {f32(math.log2(math.e))}, v{A+n}
v_mul_f32 v{B+n}, {f32(1/(2*math.pi))}, v{B+n}
""")
            for which, N in enumerate((n1, n2)):
                tb += I(f"""
v_mul_f32 v{u0}, v{N}, v{A+n}
v_mul_f32 v{u1}, v{N}, v{B+n}
v_exp_f32 v{u0}, v{u0}
v_fract_f32 v{u1}, v{u1}
v_cos_f32 v{o}, v{u1}
v_sin_f32 v{o+1}, v{u1}
""")
                if which == 1:
                    tb += I(f"v_cndmask_b32 v{u0}, 0, v{u0}, vcc")
                tb += I(f"""
v_mul_f32 v{o}, v{o}, v{u0}
v_mul_f32 v{o+1}, v{o+1}, v{u0}
""")
                if which == 0:
                    tb += I(f"ds_write_b64 v{wa}, v[{o}:{o+1}] offset:{128*n}")
                else:
                    tb += I(f"ds_write_b64 v{t3}, v[{o}:{o+1}] offset:{128*n}")
            tb += I(f"""
v_add_f32 v{o}, -1.0, v{o}
v_mul_f32 v{u0}, v{lre}, v{lre}
v_fmac_f32 v{u0}, v{lim}, v{lim}
v_rcp_f32 v{u0}, v{u0}
v_mul_f32 v{cf}, v{o}, v{lre}
v_mul_f32 v{cf+1}, v{o+1}, v{lre}
v_fmac_f32 v{cf}, v{o+1}, v{lim}
v_fma_f32 v{cf+1}, -v{o}, v{lim}, v{cf+1}
v_add_f32 v{u0}, v{u0}, v{u0}
v_mul_f32 v{cf}, v{cf}, v{u0}
v_mul_f32 v{cf+1}, v{cf+1}, v{u0}
ds_write_b64 v{wb}, v[{cf}:{cf+1}] offset:{128*n}
""")
        st += tb
    P += stamp("d0iss")
    P += spread(st, D[1], 8, len(st) - 4)
    P += stamp("stats")

    vF = [80, 120]
    vA = 160
    vCS = 56
    aOne = 240
    P += I(f"v_mov_b32 v{a0}, 0x3f803f80")
    P += I("\n".join(f"v_accvgpr_write_b32 a{aOne+k}, v{a0}" for k in range(4)))

    def acc_(m, y):
        return vA + 4 * (6 * m + y)

    def reads(s):
        slot, h, b = (s // 2) % 3, s % 2, vF[s % 2]
        xs = [I(f"ds_read_b128 v[{b+4*m}:{b+4*m+3}], v{vbX[h]} offset:{slot*16384 + m*2048}") for m in range(4)]
        ws = []
        for y in range(6):
            r = b + 16 + 4 * y
            if ssm:
                ws.append(I(f"ds_read_b128 v[{r}:{r+3}], v{vbW[h]} offset:{slot*24576 + (y&1)*6144 + (y>>1)*2048}"))
            else:
                for e in range(2):
                    ws.append(I(f"ds_read_b64_tr_b16 v[{r+2*e}:{r+2*e+1}], v{vbW[y]} offset:{slot*24576 + h*12288 + e*1536}"))
        k = 1 if ssm else 2
        return ws[:k] + xs + ws[k:]

    def mfmas(s):
        b = vF[s % 2]
        o = []
        for y in range(6):
            w = vr(b + 16 + 4 * y, 4)
            for m in range(5):
                x = vr(b + 4 * m, 4) if m < 4 else vr(aOne, 4, 'a')
                d = vr(acc_(m, y), 4) if m < 4 else vr(vCS + 4 * y, 4)
                c = d if s else "0"
                o.append(I(f"v_mfma_f32_16x16x32_bf16 {d}, {x}, {w}, {c}" if ssm else f"v_mfma_f32_16x16x32_bf16 {d}, {w}, {x}, {c}"))
        return o

    fill = [[] for _ in range(20)]
    head = [[] for _ in range(20)]
    barw = [[] for _ in range(20)]
    for i in range(2, 10):
        if i == 2:
            fill[0] += D[2]
        else:
            fill[2 * i - 5] += D[i][:5]
            fill[2 * i - 4] += D[i][5:]

    sRO = 4
    P += I(f"v_lshlrev_b32 v{vRl}, 4, v{vL}")
    if not ssm:
        sRI = 5
        g = I(f"""
s_lshr_b32 s{sT0}, s{sL}, 3
s_and_b32 s{sT1}, s{sL}, 7
s_mul_i32 s{sT2}, s{sT0}, 3
s_add_u32 s{sT2}, s{sT2}, s{sWv}
s_mul_i32 s{sT2}, s{sT2}, {32*1280}
s_mul_i32 s{sRI}, s{sT1}, 160
s_add_u32 s{sRI}, s{sRI}, s{sT2}
s_mul_i32 s{sT2}, s{sWv}, 18
s_add_u32 s{sT2}, s{sT2}, s{sT0}
s_mul_i32 s{sT1}, s{sT1}, 96
s_add_u32 s{sT2}, s{sT2}, s{sT1}
s_mul_i32 s{sRO}, s{sT2}, 5120
s_add_u32 s{sRO}, s{sRO}, {WS_WP}
s_cmp_eq_u32 s{sWv}, 3
s_cselect_b32 s{sRI}, {OOB}, s{sRI}
s_cselect_b32 s{sRO}, {OOB}, s{sRO}
v_mul_u32_u24 v{a0}, {4*1280}, v{vQ}
v_lshl_add_u32 v{a1}, v{vC}, 1, v{a0}
v_lshl_add_u32 v{a0}, v{vC}, 3, v{a0}
v_add_u32 v{t0}, {16*1280}, v{a0}
v_add_u32 v{t1}, {16*1280}, v{a1}
s_mov_b32 s{sT0}, 0x05040100
s_mov_b32 s{sT1}, 0x07060302
""")
        P += g
        vRi = V.get(16, 2)
        vRs = [t2, t3, a2, vTag] + [vPo + k for k in range(4)]
        lds_ = []
        for j in range(8):
            lds_.append(I(f"buffer_load_dwordx2 v[{vRi+2*j}:{vRi+2*j+1}], v{a0 if j < 4 else t0}, {q4(sR)}, s{sRI} offen offset:{(j%4)*1280}"))
        for j in range(8):
            lds_.append(I(f"buffer_load_ushort v{vRs[j]}, v{a1 if j < 4 else t1}, {q4(sR)}, s{sRI} offen offset:{(j%4)*1280 + 128}"))
        fill[cfg.rel_ld] += lds_
        vRo = V.get(4, 2)
        pr, rel_st = [], []
        for nt in range(5):
            for jj in range(4):
                if nt < 4:
                    lo, hi = vRi + 4 * jj + (nt >> 1), vRi + 4 * jj + 2 + (nt >> 1)
                    pr.append(I(f"v_perm_b32 v{vRo+jj}, v{hi}, v{lo}, s{sT1 if nt & 1 else sT0}"))
                else:
                    pr.append(I(f"v_lshl_or_b32 v{vRo+jj}, v{vRs[2*jj+1]}, 16, v{vRs[2*jj]}"))
            x = I(f"buffer_store_dwordx4 v[{vRo}:{vRo+3}], v{vRl}, {q4(sWS)}, s{sRO} offen offset:{1024*(nt%4)} sc1")
            if nt == 3:
                x += I(f"s_add_u32 s{sRO}, s{sRO}, 4096")
            rel_st.append(x[0])
            pr.append(x)
        h = len(pr) // 2
        fill[cfg.rel_proc] += pr[:h]
        fill[cfg.rel_proc + 1] += pr[h:]
        rel_free = lambda: (V.put(vRi, 16), V.put(vRo, 4))
    else:
        sRI = 5
        vRc = [vTag] + [vPo + k for k in range(4)]
        g = I(f"""
s_sub_u32 s{sT0}, s{sL}, 144
s_and_b32 s{sT1}, s{sT0}, 7
s_lshr_b32 s{sT0}, s{sT0}, 3
s_mul_i32 s{sRI}, s{sT1}, {80*1280}
s_lshl_b32 s{sT2}, s{sT0}, 7
s_add_u32 s{sRI}, s{sRI}, s{sT2}
s_lshl_b32 s{sT2}, s{sT0}, 2
s_add_u32 s{sT2}, s{sT2}, s{sWv}
s_mul_i32 s{sT1}, s{sT1}, 96
s_add_u32 s{sT2}, s{sT2}, s{sT1}
s_add_u32 s{sT2}, s{sT2}, 56
s_mul_i32 s{sRO}, s{sT2}, 5120
s_add_u32 s{sRO}, s{sRO}, {WS_WP}
s_cmp_ge_u32 s{sT0}, 10
s_cselect_b32 s{sRI}, {OOB}, s{sRI}
s_cselect_b32 s{sRO}, {OOB}, s{sRO}
s_lshr_b32 s{sT0}, s{sWv}, 1
s_mul_i32 s{sT1}, s{sT0}, 40
v_lshrrev_b32 v{a0}, 3, v{vL}
v_add_u32 v{a0}, s{sT1}, v{a0}
v_and_b32 v{a1}, 7, v{vL}
s_mul_i32 s{sT0}, s{sT0}, 5120
s_and_b32 s{sT1}, s{sWv}, 1
s_mul_i32 s{sT1}, s{sT1}, 10240
s_add_u32 s{sT0}, s{sT0}, s{sT1}
s_add_u32 s{sT0}, s{sT0}, {L_CST}
""")
        for j in range(5):
            g += I(f"""
v_add_u32 v{a2}, {8*j}, v{a0}
v_mul_u32_u24 v{vRc[j]}, 1280, v{a2}
v_bfe_u32 v{a2}, v{a2}, 2, 3
v_xor_b32 v{a2}, v{a2}, v{a1}
v_lshl_add_u32 v{vRc[j]}, v{a2}, 4, v{vRc[j]}
""")
            if j % 4:
                g += I(f"v_subrev_u32 v{vRc[j]}, {1024*(j%4)}, v{vRc[j]}")
        g += I(f"""
v_lshrrev_b32 v{a0}, 1, v{vQ}
s_lshl_b32 s{sT1}, s{sWv}, 1
v_add_u32 v{a0}, s{sT1}, v{a0}
v_and_b32 v{a1}, 1, v{vQ}
v_lshlrev_b32 v{a1}, 3, v{a1}
v_add_u32 v{a1}, {L_CST}, v{a1}
v_and_b32 v{a2}, 7, v{vC}
v_xor_b32 v{a2}, v{a2}, v{a0}
v_lshl_add_u32 v{t0}, v{a2}, 4, v{a1}
v_lshl_add_u32 v{t0}, v{vC}, 9, v{t0}
v_lshrrev_b32 v{a2}, 2, v{vC}
v_xor_b32 v{a2}, v{a2}, v{a0}
v_lshl_add_u32 v{t1}, v{a2}, 4, v{a1}
v_lshl_add_u32 v{t1}, v{vC}, 7, v{t1}
""")
        P += g
        lds_ = []
        for j in range(5):
            h = I(f"s_add_u32 m0, s{sT0}, {4096*(j//4)}") if j % 4 == 0 else []
            lds_ += h + I(f"buffer_load_dwordx4 v{vRc[j]}, {q4(sR)}, s{sRI} offen offset:{1024*(j%4)} lds")
        assert cfg.rel_ld == 0 or cfg.rel_ld % 2 == 1
        head[cfg.rel_ld] += lds_
        rp = cfg.rel_proc | 1
        barw[rp] += [lds_[-1]]
        vRo = V.get(20, 2)
        pr, rel_st = [], []
        for nt in range(5):
            for part in range(2):
                r = vRo + 4 * nt + 2 * part
                pr.append(I(f"ds_read_b64 v[{r}:{r+1}], v{t0 if nt < 4 else t1} offset:{part*10240 + (nt*128 if nt < 4 else 64*128)}"))
        fill[rp] += pr
        pr = []
        for nt in range(5):
            r = vRo + 4 * nt
            x = I(f"buffer_store_dwordx4 v[{r}:{r+3}], v{vRl}, {q4(sWS)}, s{sRO} offen offset:{1024*(nt%4)} sc1")
            if nt == 3:
                x += I(f"s_add_u32 s{sRO}, s{sRO}, 4096")
            rel_st.append(x[0])
            pr.append(x)
        fill[rp + 1] += pr
        rel_free = lambda: V.put(vRo, 20)

    barw[cfg.f0_flag] += rel_st + st_store
    head[cfg.f0_flag] += I(f"""
s_lshl_b32 s{sT0}, s{sL}, 2
s_add_u32 s{sT0}, s{sT0}, {WS_F0}
v_mov_b32 v{vTag}, s{sTAG}
v_mov_b32 v{a0}, s{sT0}
v_mov_b32 v{a1}, {OOB}
v_cmp_eq_u32 vcc, 0, v0
v_cndmask_b32 v{a0}, v{a1}, v{a0}, vcc
buffer_store_dword v{vTag}, v{a0}, {q4(sWS)}, 0 offen sc1
""")
    rel_free()
    sCnt = 24
    pl = f"buffer_load_dwordx4 v[{vPo}:{vPo+3}], v{vRl}, {q4(sWS)}, s{sT2} offen sc1"
    fill[cfg.f0_poll] += [I(f"s_mov_b32 s{sT2}, {WS_F0}\n{pl}")]
    chk = f"""v_xor_b32 v{vPo}, s{sTAG}, v{vPo}
v_bitop3_b32 v{vPo}, v{vPo+1}, v{vTag}, v{vPo} bitop3:0xbe
v_bitop3_b32 v{vPo}, v{vPo+2}, v{vTag}, v{vPo} bitop3:0xbe
v_bitop3_b32 v{vPo}, v{vPo+3}, v{vTag}, v{vPo} bitop3:0xbe
v_cmp_ne_u32 vcc, 0, v{vPo}"""

    def poll_tail(lbl, load, check):
        return [Raw(f"""    s_cbranch_vccz L_{T}_{lbl}_ok
    s_mov_b32 s{sCnt}, 0
L_{T}_{lbl}_retry:
    {load}
    s_add_u32 s{sCnt}, s{sCnt}, 1
    s_waitcnt vmcnt(0)
    {check}
    s_cmp_ge_u32 s{sCnt}, {cfg.spin}
    s_cbranch_scc1 L_{T}_{lbl}_ok
    s_cbranch_vccnz L_{T}_{lbl}_retry
L_{T}_{lbl}_ok:""")]
    pc = cfg.f0_poll + 2
    head[pc] += I(chk) + poll_tail("f0", pl, chk)
    head[pc] += I(f"""
s_cmp_eq_u32 s2, 0
s_cselect_b32 s{sT0}, {WS_EPOCH}, {OOB}
v_lshlrev_b32 v{a0}, 24, v0
v_and_b32 v{a1}, 127, v0
v_lshrrev_b32 v{a2}, 3, v{a1}
v_and_b32 v{t0}, 7, v{a1}
v_lshlrev_b32 v{a2}, 7, v{a2}
v_lshl_add_u32 v{a2}, v{t0}, 3, v{a2}
s_lshl_b32 s{sT1}, s{sRB1}, 11
s_add_u32 s{sT1}, s{sT1}, {WS_STATS}
buffer_load_dwordx2 v[{vPo}:{vPo+1}], v{a2}, {q4(sWS)}, s{sT1} offen sc1
v_min_u32 v{a0}, 0x2000000, v{a0}
v_lshlrev_b32 v{a1}, 2, v{a1}
v_add_u32 v{a1}, {L_ST}, v{a1}
v_lshlrev_b32 v{a0}, 1, v{a0}
buffer_store_dword v{vTag}, v{a0}, {q4(sWS)}, s{sT0} offen sc1
""")
    fill[pc + 1] += [[], [], [], [], [], [], [], [], I(f"ds_write2_b32 v{a1}, v{vPo}, v{vPo+1} offset0:0 offset1:128")]

    sWP, sHA, sRB2, sCT2 = S.get(), S.get(), S.get(), S.get()
    P += I(f"""
s_and_b32 s{sRB2}, s2, 7
s_lshl_b32 s{sRB2}, s{sRB2}, 2
s_lshr_b32 s{sCT2}, s2, 6
s_add_u32 s{sRB2}, s{sRB2}, s{sCT2}
s_lshr_b32 s{sCT2}, s2, 3
s_and_b32 s{sCT2}, s{sCT2}, 7
s_mul_i32 s{sWP}, s{sCT2}, 96
s_add_u32 s{sWP}, s{sWP}, s{sWv}
s_mul_i32 s{sWP}, s{sWP}, 5120
s_add_u32 s{sWP}, s{sWP}, {WS_WP}
s_mul_i32 s{sHA}, s{sRB2}, 96
s_add_u32 s{sHA}, s{sHA}, s{sWv}
s_lshl_b32 s{sHA}, s{sHA}, 12
s_add_u32 s{sHA}, s{sHA}, {WS_HID}
""")
    sWo, sAo = sM0X, sM0W

    def wload(i):
        g = []
        b = 20 * (i % 12)
        h = I(f"s_add_u32 s{sWo}, s{sWP}, {i*4*5120}")
        if i == 13:
            h += I(f"s_cmp_ge_u32 s{sWv}, 2\ns_cselect_b32 s{sWo}, {OOB}, s{sWo}")
        for nt in range(5):
            x = I(f"buffer_load_dwordx4 a[{b+4*nt}:{b+4*nt+3}], v{vRl if nt < 4 else vRl2}, {q4(sWS)}, s{sWo} offen offset:{1024*(nt%4)} sc1")
            g.append((h if nt == 0 else []) + x)
        return g
    assert pc >= 15
    head[pc] += I(f"v_add_u32 v{vRl2}, 4096, v{vRl}")
    WL = [wload(i) for i in range(24)]
    wq = [x for i in range(12) for x in WL[i]]
    for s in range(pc, 20):
        fill[s] += wq[:5]
        wq = wq[5:]

    fb = vF[0]
    if not ssm:
        vB1 = V.get(12, 2)
        g = srd(sT, 26, 3456) + I(f"""
s_mul_i32 s{sT0}, s{sCT}, 384
s_and_b32 s{sT1}, s{sWv}, 1
s_mul_i32 s{sT1}, s{sT1}, 192
s_add_u32 s{sT0}, s{sT0}, s{sT1}
v_lshlrev_b32 v{t2}, 3, v{vQ}""")
        head[cfg.f0_flag + 2] += g
        for ft in range(6):
            fill[cfg.f0_flag + 2] += [I(f"buffer_load_dwordx2 v[{vB1+2*ft}:{vB1+2*ft+1}], v{t2}, {q4(sT)}, s{sT0} offen offset:{32*ft}")]
        vRS = fb
        vBf = fb + 8
        head[18] += I(f"""
s_lshr_b32 s{sT0}, s{sWv}, 1
s_lshl_b32 s{sT0}, s{sT0}, 8
s_add_u32 s{sT0}, s{sT0}, {L_ST}
v_lshl_add_u32 v{t2}, v{vC}, 2, s{sT0}""")
        for m in range(4):
            fill[19] += [I(f"ds_read2_b32 v[{vRS+2*m}:{vRS+2*m+1}], v{t2} offset0:{16*m} offset1:{128+16*m}")]
        for k in range(12):
            fill[19] += [I(f"v_lshlrev_b32 v{vBf+2*k}, 16, v{vB1+k}"), I(f"v_and_b32 v{vBf+2*k+1}, 0xffff0000, v{vB1+k}")]
    else:
        vRS, vMR = fb, fb + 16
        head[18] += I(f"""
s_lshr_b32 s{sT0}, s{sWv}, 1
s_lshl_b32 s{sT0}, s{sT0}, 8
s_add_u32 s{sT0}, s{sT0}, {L_ST}
v_lshl_add_u32 v{t2}, v{vQ}, 6, s{sT0}
s_and_b32 s{sT1}, s{sWv}, 1
s_mul_i32 s{sT1}, s{sT1}, 384
s_add_u32 s{sT1}, s{sT1}, {L_TAB}
v_lshl_add_u32 v{t3}, v{vC}, 3, s{sT1}""")
        for k in range(4):
            fill[19] += [I(f"ds_read_b128 v[{vRS+4*k}:{vRS+4*k+3}], v{t2} offset:{16*k}"),
                         I(f"ds_read_b128 v[{vMR+4*k}:{vMR+4*k+3}], v{t2} offset:{512+16*k}")]
        vCo, vLam = V.get(6, 2), V.get(6, 2)
        for n in range(3):
            fill[19] += [I(f"ds_read_b64 v[{vCo+2*n}:{vCo+2*n+1}], v{t3} offset:{14*768+128*n}"),
                         I(f"ds_read_b64 v[{vLam+2*n}:{vLam+2*n+1}], v{t3} offset:{8*768+128*n}")]

    P += [Wait([D[0][-1][-1]], lgkm0=True)] + I("s_barrier") + stamp("slab0") + reads(0)
    for s in range(20):
        if s % 2 == 1 and s < 19:
            P += [Wait([D[s // 2 + 1][-1][-1]] + barw[s], lgkm0=True)] + I("s_barrier") + stamp(f"b{s}")
        else:
            assert not barw[s]
        mf = mfmas(s)
        rd = reads(s + 1) if s < 19 else []
        body = spread(mf, rd, 0, 22)
        body = spread(body, fill[s], 1, 29)
        P += [body[0], head[s], body[1:]]
    P += stamp("p1end")
    for r in vXo[1:] + vWo + vbX + vbW:
        V.put(r)
    V.put(vF[1], 40)

    sHS = 25
    hid_st = []
    if not ssm:
        V.put(vB1, 12)
        P += I(f"""
s_lshl_b32 s{sT0}, s{sRB1}, 1
s_lshr_b32 s{sT1}, s{sWv}, 1
s_add_u32 s{sT0}, s{sT0}, s{sT1}
s_mul_i32 s{sT0}, s{sT0}, 96
s_lshl_b32 s{sT1}, s{sCT}, 1
s_add_u32 s{sT0}, s{sT0}, s{sT1}
s_and_b32 s{sT1}, s{sWv}, 1
s_add_u32 s{sT0}, s{sT0}, s{sT1}
s_lshl_b32 s{sT0}, s{sT0}, 12
s_add_u32 s{sHS}, s{sT0}, {WS_HID}
""")
        K0 = -2 * math.sqrt(2 / math.pi) * math.log2(math.e)
        vK = V.get(2, 2)
        P += I(f"v_mov_b32 v{vK}, {f32(K0*0.044715)}\nv_mov_b32 v{vK+1}, {f32(K0)}")
        tmp = [V.get(8, 2) for _ in range(2)]
        outq = [V.get(4, 2) for _ in range(2)]
        ep = []
        for j in range(3):
            for m in range(4):
                z, e = tmp
                o = outq[m & 1]
                prs = [(acc_(m, 2 * j + (k >> 1)) + 2 * (k & 1), 4 * (2 * j + (k >> 1)) + 2 * (k & 1)) for k in range(4)]
                rs = f"v[{vRS+2*m}:{vRS+2*m+1}]"
                p2 = lambda r: f"v[{r}:{r+1}]"
                for k, (a, c) in enumerate(prs):
                    ep += I(f"v_pk_fma_f32 {p2(z+2*k)}, {rs}, {p2(vCS+c)}, {p2(vBf+c)} op_sel:[1,0,0] op_sel_hi:[1,1,1] neg_lo:[1,0,0] neg_hi:[1,0,0]")
                for k, (a, c) in enumerate(prs):
                    ep += I(f"v_pk_fma_f32 {p2(a)}, {rs}, {p2(a)}, {p2(z+2*k)} op_sel:[0,0,0] op_sel_hi:[0,1,1]")
                for k, (a, c) in enumerate(prs):
                    ep += I(f"v_pk_mul_f32 {p2(z+2*k)}, {p2(a)}, {p2(a)}")
                for k, (a, c) in enumerate(prs):
                    ep += I(f"v_pk_fma_f32 {p2(z+2*k)}, {p2(z+2*k)}, {p2(vK)}, {p2(vK)} op_sel:[0,0,1] op_sel_hi:[1,0,1]")
                for k, (a, c) in enumerate(prs):
                    ep += I(f"v_pk_mul_f32 {p2(z+2*k)}, {p2(z+2*k)}, {p2(a)}")
                for k in range(8):
                    ep += I(f"v_exp_f32 v{e+k}, v{z+k}")
                for k in range(4):
                    ep += I(f"v_pk_add_f32 {p2(e+2*k)}, {p2(e+2*k)}, 1.0 op_sel_hi:[1,0]")
                for k in range(8):
                    ep += I(f"v_rcp_f32 v{e+k}, v{e+k}")
                for k, (a, c) in enumerate(prs):
                    ep += I(f"v_pk_mul_f32 {p2(a)}, {p2(a)}, {p2(e+2*k)}")
                for k, (a, c) in enumerate(prs):
                    ep += I(f"v_cvt_pk_bf16_f32 v{o+k}, v{a}, v{a+1}")
                x = I(f"buffer_store_dwordx4 v[{o}:{o+3}], v{vRl}, {q4(sWS)}, s{sHS} offen offset:{1024*m} sc1")
                hid_st += x
                ep += x
            if j < 2:
                ep += I(f"s_add_u32 s{sHS}, s{sHS}, {18*4096}")
        nw = len(wq) - 6
        P += spread(ep, wq[:nw])
        P += wq[nw:]
        wq = []
        V.put(vK, 2); [V.put(r, 8) for r in tmp]; [V.put(r, 4) for r in outq]
        V.put(vF[0], 40)
    else:
        p2 = lambda r: f"v[{r}:{r+1}]"
        ep = []
        tt = V.get(2, 2)
        for n in range(3):
            for part in range(2):
                y = 2 * n + part
                for m in range(4):
                    for h in range(2):
                        a = acc_(m, y) + 2 * h
                        ep += I(f"v_pk_mul_f32 {p2(tt)}, {p2(vMR+4*m+2*h)}, {p2(vCS+4*y)}")
                        ep += I(f"v_pk_fma_f32 {p2(a)}, {p2(vRS+4*m+2*h)}, {p2(a)}, {p2(tt)} neg_lo:[0,0,1] neg_hi:[0,0,1]")
        W = [[None] * 16 for _ in range(3)]
        spare = tt
        for n in range(3):
            co = p2(vCo + 2 * n)
            for m in range(4):
                for h in range(2):
                    re_, im_ = acc_(m, 2 * n) + 2 * h, acc_(m, 2 * n + 1) + 2 * h
                    tau = 4 * m + 2 * h
                    ep += I(f"""v_pk_mul_f32 {p2(spare)}, {co}, {p2(re_)} op_sel:[0,0] op_sel_hi:[1,0]
v_pk_mul_f32 {p2(re_)}, {co}, {p2(re_)} op_sel:[0,1] op_sel_hi:[1,1]
v_pk_fma_f32 {p2(spare)}, {co}, {p2(im_)}, {p2(spare)} op_sel:[1,0,0] op_sel_hi:[0,0,1] neg_lo:[1,0,0]
v_pk_fma_f32 {p2(re_)}, {co}, {p2(im_)}, {p2(re_)} op_sel:[1,1,0] op_sel_hi:[0,1,1] neg_lo:[1,0,0]""")
                    W[n][tau], W[n][tau + 1] = spare, re_
                    spare = im_

        def cfma(d, l, x, add, tmp_):
            return I(f"""v_pk_fma_f32 {p2(tmp_)}, {p2(l)}, {p2(x)}, {p2(add)} op_sel:[0,0,0] op_sel_hi:[0,1,1]
v_pk_fma_f32 {p2(d)}, {p2(l)}, {p2(x)}, {p2(tmp_)} op_sel:[1,1,0] op_sel_hi:[1,0,1] neg_lo:[1,0,0]""")

        def cmul(d, l, x, tmp_):
            return I(f"""v_pk_mul_f32 {p2(tmp_)}, {p2(l)}, {p2(x)} op_sel:[0,0] op_sel_hi:[0,1]
v_pk_fma_f32 {p2(d)}, {p2(l)}, {p2(x)}, {p2(tmp_)} op_sel:[1,1,0] op_sel_hi:[1,0,1] neg_lo:[1,0,0]""")
        vE = V.get(6, 2)
        vTm = V.get(2, 2)
        for n in range(3):
            ep += cfma(vE + 2 * n, vLam + 2 * n, W[n][0], W[n][1], vTm)
            for tau in range(2, 16):
                ep += cfma(vE + 2 * n, vLam + 2 * n, vE + 2 * n, W[n][tau], vTm)
        nw = 20
        P += spread(ep, wq[:nw])
        wq = wq[nw:]
        V.put(vF[0], 40)
        V.put(vCo, 6)
        vNb = V.get(18, 2)
        vWt = V.get(18, 2)
        vL16 = V.get(6, 2)
        vPx = V.get(6, 2)
        P += I(f"""
s_lshr_b32 s{sT0}, s{sWv}, 1
s_lshl_b32 s{sT0}, s{sT0}, 2
v_add_u32 v{a2}, s{sT0}, v{vQ}
v_mul_u32_u24 v{a0}, 768, v{a2}
v_add_u32 v{a0}, v{a0}, v{t3}
v_add_u32 v{a0}, {L_SEG - L_TAB}, v{a0}
""")
        for n in range(3):
            P += I(f"ds_write_b64 v{a0}, {p2(vE+2*n)} offset:{128*n}")
        for n in range(3):
            P += I(f"ds_read_b64 {p2(vL16+2*n)}, v{t3} offset:{10*768+128*n}")
        for d in range(1, 4):
            P += I(f"""
v_cmp_le_u32 vcc, {d}, v{vQ}
v_subrev_u32 v{a1}, {768*d}, v{a0}
v_add_u32 v{t0}, {15*768}, v{t3}
v_cndmask_b32 v{a1}, v{t0}, v{a1}, vcc
""")
            for n in range(3):
                P += I(f"ds_read_b64 {p2(vNb+6*(d-1)+2*n)}, v{a1} offset:{128*n}")
            if d == 3:
                for n in range(3):
                    P += I(f"ds_read_b64 {p2(vWt+2*n)}, v{t3} offset:{11*768+128*n}")
        for n in range(3):
            P += cfma(vPx + 2 * n, vL16 + 2 * n, vNb + 6 + 2 * n, vNb + 2 * n, vTm)
            P += cfma(vPx + 2 * n, vWt + 2 * n, vNb + 12 + 2 * n, vPx + 2 * n, vTm)
            P += cfma(vE + 2 * n, vL16 + 2 * n, vPx + 2 * n, vE + 2 * n, vTm)
        vTb = V.get()
        P += I(f"""
v_and_b32 v{t0}, 3, v{vC}
v_lshlrev_b32 v{t0}, 3, v{t0}
v_lshrrev_b32 v{vTb}, v{t0}, v{vTag}
v_and_b32 v{vTb}, 0xff, v{vTb}
s_sub_u32 s{sT0}, s{sCT}, 9
s_lshl_b32 s{sT0}, s{sT0}, 1
s_and_b32 s{sT1}, s{sWv}, 1
s_add_u32 s{sT0}, s{sT0}, s{sT1}
s_mul_i32 s{sT0}, s{sT0}, 384
s_add_u32 s{sT0}, s{sT0}, {WS_EG}
s_lshl_b32 s{sT1}, s{sRB1}, 1
s_lshr_b32 s{sT2}, s{sWv}, 1
s_add_u32 s{sT2}, s{sT2}, s{sT1}
s_mul_i32 s{sT2}, s{sT2}, {14*384}
s_add_u32 s{sT2}, s{sT2}, s{sT0}
v_lshlrev_b32 v{t0}, 3, v{vC}
v_mov_b32 v{t1}, {OOB}
v_cmp_eq_u32 vcc, 3, v{vQ}
v_cndmask_b32 v{t1}, v{t1}, v{t0}, vcc
v_mov_b32 v{t2}, 0xff
""")
        eg_st = []
        for n in range(3):
            P += I(f"v_bfi_b32 v{vNb+2*n}, v{t2}, v{vTb}, v{vE+2*n}\nv_mov_b32 v{vNb+2*n+1}, v{vE+2*n+1}")
            x = I(f"buffer_store_dwordx2 {p2(vNb+2*n)}, v{t1}, {q4(sWS)}, s{sT2} offen offset:{128*n} sc1")
            eg_st += x
            P += x
        P += stamp("Epub")
        for n in range(3):
            P += I(f"ds_write_b64 v{a0}, {p2(vE+2*n)} offset:{128*n}")
        vG = V.get(24, 2)
        vGa = [V.get() for _ in range(4)]
        vGt = [V.get() for _ in range(4)]
        for i in range(4):
            P += I(f"""
v_lshlrev_b32 v{a1}, 2, v{a2}
v_sub_u32 v{a1}, s{sT1}, v{a1}
v_subrev_u32 v{a1}, {1+i}, v{a1}
v_cmp_le_i32 vcc, 0, v{a1}
v_mul_u32_u24 v{a1}, {14*384}, v{a1}
v_add_u32 v{a1}, v{a1}, v{t0}
v_mov_b32 v{vGa[i]}, {OOB}
v_cndmask_b32 v{vGa[i]}, v{vGa[i]}, v{a1}, vcc
v_cndmask_b32 v{vGt[i]}, 0, v{vTb}, vcc
""")
        vL64, vLg, vLq = vWt, vWt + 6, vWt + 12
        P += I(f"""
v_mul_u32_u24 v{a1}, 768, v{a2}
v_add_u32 v{a1}, v{a1}, v{t3}
v_add_u32 v{t1}, 9, v{vQ}
v_cmp_eq_u32 vcc, 0, v{vQ}
v_cndmask_b32 v{t1}, v{t1}, v{vQ}, vcc
v_mul_u32_u24 v{t1}, 768, v{t1}
v_add_u32 v{t1}, v{t1}, v{t3}
""")
        for n in range(3):
            P += I(f"""ds_read_b64 {p2(vL64+2*n)}, v{t3} offset:{13*768+128*n}
ds_read_b64 {p2(vLg+2*n)}, v{a1} offset:{128*n}
ds_read_b64 {p2(vLq+2*n)}, v{t1} offset:{128*n}""")
        P += wq[:6]
        wq = wq[6:]
        P += [Wait(eg_st)]
        gl = "\n".join(f"buffer_load_dwordx2 {p2(vG+6*i+2*n)}, v{vGa[i]}, {q4(sWS)}, s{sT0} offen offset:{128*n} sc1" for i in range(4) for n in range(3))
        gc = f"v_xor_b32 v{a1}, v{vG}, v{vGt[0]}\n" + "\n".join(
            f"v_bitop3_b32 v{a1}, v{vG+6*i+2*n}, v{vGt[i]}, v{a1} bitop3:0xbe" for i in range(4) for n in range(3) if i + n) + \
            f"\nv_and_b32 v{a1}, 0xff, v{a1}\nv_cmp_ne_u32 vcc, 0, v{a1}"
        P += I(gl) + I(gc) + poll_tail("eg", gl.replace("\n", "\n    "), gc.replace("\n", "\n    "))
        P += stamp("Egot")
        vH = vNb
        for n in range(3):
            P += cfma(vH + 2 * n, vL64 + 2 * n, vG + 18 + 2 * n, vG + 12 + 2 * n, vTm)
            P += cfma(vH + 2 * n, vL64 + 2 * n, vH + 2 * n, vG + 6 + 2 * n, vTm)
            P += cfma(vH + 2 * n, vL64 + 2 * n, vH + 2 * n, vG + 2 * n, vTm)
            P += cmul(vH + 2 * n, vLg + 2 * n, vH + 2 * n, vTm)
        for k in range(6):
            P += I(f"v_mov_b32 v{vH+6+k}, v{vH+k}")
        for k in range(6):
            P += I(f"v_permlane32_swap_b32 v{vH+k}, v{vH+6+k}")
        for n in range(3):
            P += I(f"v_pk_add_f32 {p2(vH+2*n)}, {p2(vH+2*n)}, {p2(vH+6+2*n)}")
        for k in range(6):
            P += I(f"v_mov_b32 v{vH+6+k}, v{vH+k}")
        for k in range(6):
            P += I(f"v_permlane16_swap_b32 v{vH+k}, v{vH+6+k}")
        for n in range(3):
            P += I(f"v_pk_add_f32 {p2(vH+2*n)}, {p2(vH+2*n)}, {p2(vH+6+2*n)}")
        P += I(f"""
s_lshr_b32 s{sT0}, s{sWv}, 1
s_lshl_b32 s{sT0}, s{sT0}, 10
v_subrev_u32 v{a1}, {L_TAB - L_CST}, v{t3}
v_add_u32 v{a1}, s{sT0}, v{a1}
v_xor_b32 v{t1}, 1024, v{a1}
""")
        for n in range(3):
            P += I(f"ds_write_b64 v{a1}, {p2(vH+2*n)} offset:{128*n}")
        P += I(f"""
s_cmp_ge_u32 s{sWv}, 2
s_cselect_b32 s{sT0}, {13*768}, 0
s_cselect_b32 s{sT1}, {L_SEG - L_TAB + 3*768 - 15*768}, 0
s_add_u32 s{sT1}, s{sT1}, {15*768}
v_add_u32 v{t0}, s{sT0}, v{t3}
v_add_u32 v{t2}, s{sT1}, v{t3}
""")
        P += [Wait(lgkm0=True)] + I("s_barrier")
        for n in range(3):
            P += I(f"""ds_read_b64 {p2(vH+6+2*n)}, v{t1} offset:{128*n}
ds_read_b64 {p2(vG+2*n)}, v{t0} offset:{128*n}
ds_read_b64 {p2(vG+6+2*n)}, v{t2} offset:{128*n}""")
        for n in range(3):
            P += I(f"v_pk_add_f32 {p2(vH+2*n)}, {p2(vH+2*n)}, {p2(vH+6+2*n)}")
            P += cfma(vH + 2 * n, vG + 2 * n, vH + 2 * n, vG + 6 + 2 * n, vTm)
            P += cfma(vH + 2 * n, vLq + 2 * n, vH + 2 * n, vPx + 2 * n, vTm)
        LT, BLK = 16384, 16 * 144
        P += I(f"""
s_and_b32 s{sT0}, s{sWv}, 1
s_mul_i32 s{sT0}, s{sT0}, 16384
s_cmp_ge_u32 s{sWv}, 2
s_cselect_b32 s{sT1}, {73728 - 16384}, 0
s_add_u32 s{sT0}, s{sT0}, s{sT1}
s_add_u32 s{sT0}, s{sT0}, 16384
v_mul_u32_u24 v{a0}, 144, v{vC}
v_lshl_add_u32 v{a0}, v{vQ}, 5, v{a0}
v_add_u32 v{a0}, s{sT0}, v{a0}
v_lshrrev_b32 v{a1}, 2, v{vL}
v_mul_u32_u24 v{a1}, 144, v{a1}
v_and_b32 v{a2}, 3, v{vL}
v_lshl_add_u32 v{a1}, v{a2}, 3, v{a1}
v_add_u32 v{a1}, s{sT0}, v{a1}
s_lshl_b32 s{sT0}, s{sRB1}, 1
s_lshr_b32 s{sT1}, s{sWv}, 1
s_add_u32 s{sT0}, s{sT0}, s{sT1}
s_mul_i32 s{sT0}, s{sT0}, 96
s_lshr_b32 s{sT1}, s{sCH0}, 4
s_add_u32 s{sT0}, s{sT0}, s{sT1}
s_and_b32 s{sT1}, s{sWv}, 1
s_mul_i32 s{sT1}, s{sT1}, 3
s_add_u32 s{sT0}, s{sT0}, s{sT1}
s_add_u32 s{sT0}, s{sT0}, 56
s_lshl_b32 s{sT0}, s{sT0}, 12
s_add_u32 s{sHS}, s{sT0}, {WS_HID}
""")
        vPk = vG
        vTr = vCS
        ep = []
        pend = []
        for n in range(3):
            prev = vH + 2 * n
            blk = []
            for tau in range(16):
                blk += cfma(W[n][tau], vLam + 2 * n, prev, W[n][tau], W[n][tau])
                prev = W[n][tau]
            ep += flat(spread(blk, pend, 8, 30))
            for k in range(8):
                ep += I(f"v_cvt_pk_bf16_f32 v{vPk+k}, v{W[n][2*k]}, v{W[n][2*k+1]}")
                ep += I(f"v_cvt_pk_bf16_f32 v{vPk+8+k}, -v{W[n][2*k]+1}, -v{W[n][2*k+1]+1}")
            for part in range(2):
                for h in range(2):
                    r = vPk + 8 * part + 4 * h
                    ep += I(f"ds_write_b128 v{a0}, v[{r}:{r+3}] offset:{(2*n+part)*BLK + 16*h}")
            for tt_ in range(4):
                for part in range(2):
                    r = vTr + 4 * tt_ + 2 * part
                    ep += I(f"ds_read_b64_tr_b16 {p2(r)}, v{a1} offset:{(2*n+part)*BLK + 32*tt_}")
            pend = []
            for tt_ in range(4):
                r = vTr + 4 * tt_
                x = I(f"buffer_store_dwordx4 v[{r}:{r+3}], v{vRl}, {q4(sWS)}, s{sHS} offen offset:{1024*tt_} sc1")
                hid_st += x
                pend.append(x + (I(f"s_add_u32 s{sHS}, s{sHS}, 4096") if tt_ == 3 and n < 2 else []))
        ep += flat(pend)
        nw = max(0, len(wq) - 6)
        P += spread(ep, wq[:nw])
        P += wq[nw:]
        wq = []
        V.put(tt, 2); V.put(vE, 6); V.put(vTm, 2); V.put(vNb, 18); V.put(vWt, 18); V.put(vL16, 6); V.put(vPx, 6)
        V.put(vTb); V.put(vG, 24); [V.put(r) for r in vGa + vGt]; V.put(vLam, 6)
    P += stamp("epi")
    V.put(vA, 96); V.put(vCS, 24)
    assert all(r in V.free for r in range(19, 256)), sorted(set(range(19, 256)) - V.free)
    V.free = set(range(19, 32)) | {vL}
    P += I(f"""
s_lshl_b32 s{sT0}, s{sL}, 7
s_add_u32 s{sT0}, s{sT0}, {WS_F1}
v_lshlrev_b32 v{a0}, 2, v0
v_mov_b32 v{a1}, {OOB}
v_cmp_gt_u32 vcc, 32, v0
v_cndmask_b32 v{a0}, v{a1}, v{a0}, vcc
""")
    P += [Wait(hid_st)] + I("s_barrier")
    f1 = I(f"buffer_store_dword v{vTag}, v{a0}, {q4(sWS)}, s{sT0} offen sc1")
    P += f1
    P += stamp("f1")

    vAb, vAF, vAY = 32, 96, 176
    vAo = [V.get() for _ in range(4)]
    vFl = [V.get(), V.get()]
    vRW = [None] + [V.get() for _ in range(3)]
    P += I(f"""
s_lshr_b32 s{sT1}, s{sRB2}, 1
s_lshl_b32 s{sT1}, s{sT1}, 7
s_add_u32 s{sT1}, s{sT1}, {WS_F1}
v_min_u32 v{a1}, 8, v{vC}
v_lshl_add_u32 v{vFl[0]}, v{a1}, 11, s{sT1}
v_max_u32 v{a1}, 9, v{vC}
v_lshl_add_u32 v{vFl[1]}, v{a1}, 11, s{sT1}
""")
    for u in range(4):
        P += I(f"""
s_add_u32 s{sT0}, s{sWv}, {u}
s_and_b32 s{sT0}, s{sT0}, 3
s_lshl_b32 s{sT1}, s{sT0}, 10
v_add_u32 v{vAo[u]}, s{sT1}, v{vRl}
""")
        if u:
            P += I(f"""
s_mul_i32 s{sT1}, s{sT0}, 15360
s_add_u32 s{sT1}, s{sT1}, {(u-1)*5120}
v_add_u32 v{vRW[u]}, s{sT1}, v{vRl}
""")
    vRR = V.get()
    P += I(f"s_mul_i32 s{sT1}, s{sWv}, 15360\nv_add_u32 v{vRR}, s{sT1}, v{vRl}")

    def fpoll(k):
        return f"buffer_load_dword v{vPo+k}, v{vFl[k]}, {q4(sWS)}, 0 offen sc1", f"v_cmp_ne_u32 vcc, s{sTAG}, v{vPo+k}"
    P += [Wait(f1)]
    ld, ck = fpoll(0)
    P += I(ld) + I(ck) + poll_tail("f1a", ld, ck)
    P += stamp("f1a")

    def aload(i):
        b = vAb + 16 * (i % 4)
        h = I(f"s_add_u32 s{sAo}, s{sHA}, {i*4*4096}")
        if i == 13:
            h += I(f"s_cmp_ge_u32 s{sWv}, 2\ns_cselect_b32 s{sAo}, {OOB}, s{sAo}")
        return [(h if u == 0 else []) + I(f"buffer_load_dwordx4 v[{b+4*u}:{b+4*u+3}], v{vAo[u]}, {q4(sWS)}, s{sAo} offen sc1") for u in range(4)]
    for i in range(3):
        P += aload(i)
    fill = [[] for _ in range(24)]
    head = [[] for _ in range(24)]
    pre_ = [[] for _ in range(24)]
    for i in range(24):
        g = []
        if i + 3 < 24:
            g += aload(i + 3)
        if i >= 1 and i + 11 < 24:
            g += WL[i + 11]
        fill[i] += g
    ld, ck = fpoll(1)
    fill[9] += [I(ld)]
    pre_[11] += I(ck) + poll_tail("f1b", ld, ck)

    def accf(base, u, nt):
        return base + 20 * u + 4 * nt
    wr = [I(f"ds_write_b128 v{vRW[u]}, v[{accf(vAF,u,nt)}:{accf(vAF,u,nt)+3}] offset:{1024*nt}") for u in range(1, 4) for nt in range(5)]
    fill[14] += wr[:8]
    fill[15] += wr[8:]
    pre_[16] += [Wait(lgkm0=True)] + I("s_barrier")
    fill[16] += [I(f"ds_read_b128 v[{accf(vAF,u,nt)}:{accf(vAF,u,nt)+3}], v{vRR} offset:{(u-1)*5120 + 1024*nt}") for u in range(1, 4) for nt in range(5)]
    vXr = [vPo, vPo + 2, V.get(2, 2), V.get(2, 2)]
    ex = []
    G = lambda nt, i: accf(vAF, 0, nt) + i
    for nt in range(5):
        for i in range(4):
            ex.append(I(f"v_add_f32 v{G(nt,i)}, v{G(nt,i)}, v{accf(vAF,1,nt)+i}"))
            ex.append(I(f"v_add_f32 v{accf(vAF,2,nt)+i}, v{accf(vAF,2,nt)+i}, v{accf(vAF,3,nt)+i}"))
    for nt in range(5):
        for i in range(4):
            ex.append(I(f"v_add_f32 v{G(nt,i)}, v{G(nt,i)}, v{accf(vAF,2,nt)+i}"))
    fill[17] += ex[:30]
    fill[18] += ex[30:]
    fr = vAF + 20
    vXs, vSt2, vB2, vDk = fr, fr + 4, fr + 12, fr + 20
    vXf = fr + 28
    tq = fr + 48
    head[13] += I(f"""
s_lshl_b32 s{sT0}, s{sRB2}, 6
s_lshl_b32 s{sT1}, s{sWv}, 4
s_add_u32 s{sT0}, s{sT0}, s{sT1}
v_lshl_add_u32 v{a0}, v{vQ}, 2, s{sT0}
s_mul_i32 s{sT2}, s{sCT2}, 160
v_mul_u32_u24 v{a1}, 1280, v{a0}
v_lshl_add_u32 v{t0}, v{vC}, 3, v{a1}
v_lshl_add_u32 v{t1}, v{vC}, 1, v{a1}
v_lshrrev_b32 v{a1}, 3, v{a0}
v_and_b32 v{a2}, 7, v{a0}
v_lshlrev_b32 v{a1}, 7, v{a1}
v_lshl_add_u32 v{a1}, v{a2}, 3, v{a1}
v_add_u32 v{a1}, {WS_STATS}, v{a1}
v_lshlrev_b32 v{t2}, 3, v{vC}
v_lshlrev_b32 v{t3}, 1, v{vC}
""")
    fill[14] += [I(f"buffer_load_dwordx2 v[{vXr[i]}:{vXr[i]+1}], v{t0}, {q4(sX)}, s{sT2} offen offset:{1280*i}") for i in range(4)]
    l2 = [I(f"buffer_load_ushort v{vXs+i}, v{t1}, {q4(sX)}, s{sT2} offen offset:{1280*i+128}") for i in range(4)]
    l2 += [I(f"buffer_load_dwordx4 v[{vSt2+4*k}:{vSt2+4*k+3}], v{a1}, {q4(sWS)}, 0 offen offset:{16*k} sc1") for k in range(2)]
    l2 += [srd(sT, 30, 1280) + I(f"buffer_load_dwordx2 v[{vB2}:{vB2+1}], v{t2}, {q4(sT)}, s{sT2} offen"),
           I(f"buffer_load_ushort v{vB2+2}, v{t3}, {q4(sT)}, s{sT2} offen offset:128"),
           srd(sR, 20, 1280) + I(f"buffer_load_dwordx2 v[{vDk}:{vDk+1}], v{t2}, {q4(sR)}, s{sT2} offen"),
           I(f"buffer_load_ushort v{vDk+2}, v{t3}, {q4(sR)}, s{sT2} offen offset:128")]
    fill[19] += l2
    ex = []

    def unpack5(dst, raw2, raw1):
        return [I(f"v_lshlrev_b32 v{dst[0]}, 16, v{raw2}"), I(f"v_and_b32 v{dst[1]}, 0xffff0000, v{raw2}"),
                I(f"v_lshlrev_b32 v{dst[2]}, 16, v{raw2+1}"), I(f"v_and_b32 v{dst[3]}, 0xffff0000, v{raw2+1}"),
                I(f"v_lshlrev_b32 v{dst[4]}, 16, v{raw1}")]
    ex += unpack5([vB2 + 3 + k for k in range(5)], vB2, vB2 + 2)
    ex += unpack5([vDk + 3 + k for k in range(5)], vDk, vDk + 2)
    XF = lambda nt, i: vXf + 4 * nt + i
    for i in range(4):
        ex += unpack5([XF(nt, i) for nt in range(5)], vXr[i], vXs + i)
    for nt in range(5):
        for i in range(4):
            ex.append(I(f"v_add_f32 v{G(nt,i)}, v{G(nt,i)}, v{vB2+3+nt}"))
        for i in range(4):
            ex.append(I(f"v_mul_f32 v{tq+i}, {f32(-math.log2(math.e))}, v{G(nt,i)}"))
        for i in range(4):
            ex.append(I(f"v_exp_f32 v{tq+i}, v{tq+i}"))
        for i in range(4):
            ex.append(I(f"v_fma_f32 v{tq+4+i}, v{XF(nt,i)}, v{vSt2+2*i}, -v{vSt2+2*i+1}"))
        for i in range(4):
            ex.append(I(f"v_add_f32 v{tq+i}, 1.0, v{tq+i}"))
        for i in range(4):
            ex.append(I(f"v_rcp_f32 v{tq+i}, v{tq+i}"))
        for i in range(4):
            ex.append(I(f"v_mul_f32 v{tq+4+i}, v{tq+4+i}, v{vDk+3+nt}"))
        for i in range(4):
            ex.append(I(f"v_mul_f32 v{G(nt,i)}, v{G(nt,i)}, v{tq+i}"))
        for i in range(4):
            ex.append(I(f"v_fmac_f32 v{XF(nt,i)}, v{tq+4+i}, v{G(nt,i)}"))
    k3 = len(ex) // 3
    fill[21] += ex[:k3]
    fill[22] += ex[k3:2 * k3]
    fill[23] += ex[2 * k3:]

    for i in range(24):
        base = vAF if i < 14 else vAY
        first = i in (0, 14)
        mf = []
        for u in range(4):
            for nt in range(5):
                d = vr(accf(base, u, nt), 4)
                b = 20 * (i % 12) + 4 * nt
                mf.append(I(f"v_mfma_f32_16x16x32_bf16 {d}, v[{vAb+16*(i%4)+4*u}:{vAb+16*(i%4)+4*u+3}], a[{b}:{b+3}], {'0' if first else d}"))
        body = spread(mf, fill[i], 0, 20)
        P += [pre_[i], stamp(f"q{i}") if i in (4, 8, 11, 14, 16, 20) else [], body[0], head[i], body[1:]]
    P += stamp("p2end")
    for u in range(1, 4):
        P += I(f"v_add_u32 v{vRW[u]}, 61440, v{vRW[u]}")
    P += I(f"v_add_u32 v{vRR}, 61440, v{vRR}")
    for u in range(1, 4):
        for nt in range(5):
            P += I(f"ds_write_b128 v{vRW[u]}, v[{accf(vAY,u,nt)}:{accf(vAY,u,nt)+3}] offset:{1024*nt}")
    P += I(f"""
v_mul_u32_u24 v{a1}, 2560, v{a0}
v_lshl_add_u32 v{t0}, v{vC}, 4, v{a1}
v_lshl_add_u32 v{t1}, v{vC}, 2, v{a1}
v_add_u32 v{t2}, 5120, v{t0}
v_add_u32 v{t3}, 5120, v{t1}
s_mul_i32 s{sT2}, s{sCT2}, 320
""")
    P += [Wait(lgkm0=True)] + I("s_barrier")
    for nt in range(5):
        for u in range(1, 4):
            P += I(f"ds_read_b128 v[{accf(vAY,u,nt)}:{accf(vAY,u,nt)+3}], v{vRR} offset:{(u-1)*5120 + 1024*nt}")
    p2 = lambda r: f"v[{r}:{r+1}]"
    vO = vAb
    for nt in range(5):
        for h in range(2):
            y = lambda u: p2(accf(vAY, u, nt) + 2 * h)
            P += I(f"v_pk_add_f32 {y(0)}, {y(0)}, {y(1)}\nv_pk_add_f32 {y(2)}, {y(2)}, {y(3)}\nv_pk_add_f32 {y(0)}, {y(0)}, {y(2)}")
        for i in range(4):
            d = vO + 4 * i + nt if nt < 4 else vO + 16 + i
            P += I(f"v_fma_f32 v{d}, v{accf(vAY,0,nt)+i}, v{G(nt,i)}, v{XF(nt,i)}")
        if nt == 3:
            for i in range(4):
                P += I(f"buffer_store_dwordx4 v[{vO+4*i}:{vO+4*i+3}], v{t0 if i < 2 else t2}, {q4(sO)}, s{sT2} offen offset:{2560*(i&1)} {cfg.out_aux}")
    for i in range(4):
        P += I(f"buffer_store_dword v{vO+16+i}, v{t1 if i < 2 else t3}, {q4(sO)}, s{sT2} offen offset:{2560*(i&1)+256} {cfg.out_aux}")
    if cfg.diag:
        P += stamp("st_issued") + [Wait(vm0=True)] + stamp("end") + stamp("x")
        P += I(f"""
s_getreg_b32 s{sT0}, hwreg(HW_REG_XCC_ID)
v_writelane_b32 v{vDbg}, s{sT0}, 62
v_writelane_b32 v{vDbg}, s{sL}, 63
s_lshl_b32 s{sT0}, s2, 10
s_add_u32 s{sT0}, s{sT0}, {WS_DBG}
v_lshlrev_b32 v{a1}, 2, v0
buffer_store_dword v{vDbg}, v{a1}, {q4(sWS)}, s{sT0} offen
""")
        P += [Raw(f"; STAMPS {T} " + ",".join(names[:-1]))]
    P += I("s_endpgm")
    return P


def generate(cfg):
    hdr = open("cdna_kernels/" + NAME + ".s.ref").read().split("; Override launch")[0]
    entry = I(f"""
s_load_dwordx16 s[4:19], s[0:1], 0
s_load_dwordx2 s[20:21], s[0:1], 64
s_load_dwordx8 s[24:31], s[0:1], 80
s_load_dwordx2 s[32:33], s[0:1], 112
s_load_dwordx2 s[34:35], s[0:1], 128
""")
    ids = f"""    s_cmp_ge_u32 s2, 256
    s_cbranch_scc1 L_exit
    s_bfe_u32 s3, s2, 0x30003
    s_lshl_b32 s22, s2, 1
    s_and_b32 s22, s22, 8
    s_add_u32 s3, s3, s22
    s_lshr_b32 s22, s2, 6
    s_lshl_b32 s22, s22, 2
    s_and_b32 s23, s2, 3
    s_add_u32 s22, s22, s23
    s_lshl_b32 s23, s22, 4
    s_add_u32 s23, s23, s3
    s_cmp_ge_u32 s22, 9
    s_cbranch_scc1 L_S_start
"""
    st = {}
    body = ids
    for ssm in (False, True):
        T = "S" if ssm else "F"
        body += f"L_{T}_start:\n" + finalize(entry + build_path(ssm, cfg), st) + f"L_{T}_end:\n"
        if not ssm:
            body += "L_exit:\n    s_endpgm\n    .p2align 6\n"
    txt = f"""{hdr}; @launch grid=(256,1,1) block=(256,1,1) lds={LDS_BYTES}
.amdgcn_target "amdgcn-amd-amdhsa--gfx950"
.text
.globl {NAME}_kernel
.p2align 8
.type {NAME}_kernel,@function
{NAME}_kernel:
{body}
.section .rodata,"a"
.p2align 6
.amdhsa_kernel {NAME}_kernel
  .amdhsa_next_free_vgpr 512
  .amdhsa_next_free_sgpr 102
  .amdhsa_accum_offset 256
  .amdhsa_group_segment_fixed_size 0
  .amdhsa_kernarg_size 136
  .amdhsa_user_sgpr_count 2
  .amdhsa_user_sgpr_kernarg_segment_ptr 1
  .amdhsa_system_sgpr_workgroup_id_x 1
  .amdhsa_float_denorm_mode_32 3
.end_amdhsa_kernel
"""
    return txt, st


if __name__ == "__main__":
    cfg = Cfg()
    out = None
    for a in sys.argv[1:]:
        if "=" in a:
            k, v = a.split("=", 1)
            cur = getattr(cfg, k)
            setattr(cfg, k, type(cur)(int(v)) if isinstance(cur, (bool, int)) else v)
        else:
            out = a
    txt, st = generate(cfg)
    open(out or "cdna_kernels/" + NAME + ".s", "w").write(txt)
    print("generated", st, "lines", txt.count("\n"))
```

```python
import sys, struct, math
from kgen import *

NAME = "recurrent_scan__ssm_conv_s5__dense_activation_gelu__prompt"

WS_EPOCH = 0
WS_F0 = 0x1000
WS_F1 = 0x10000
WS_STATS = 0x30000
WS_EG = 0x60000
WS_WP = 0x100000
WS_HID = 0x500000
WS_DBG = 0x1200000
WS_SIZE = 0x1300000
OOB = 0x70000000

L_X = 0
L_W = 49152
L_CST = 122880
L_TAB = 143360
L_ST = 155648
L_SEG = 156672
LDS_BYTES = 163840


def f32(x):
    return "0x%08x" % struct.unpack("<I", struct.pack("<f", x))[0]


class Cfg:
    diag = 0
    pad = ""
    rel_ld = 0
    rel_proc = 3
    f0_flag = 7
    f0_poll = 13
    out_aux = ""
    spin = 200000


def build_path(ssm, cfg):
    T = "S" if ssm else "F"
    V = Alloc("v", 1, 56)
    S = Alloc("s", 60, 84)
    P = []
    nstamp = [0]

    names = []

    def stamp(name="", level=1):
        if cfg.pad:
            return I("s_memrealtime s[84:85]") if name in cfg.pad.split("|") else []
        if cfg.diag < level:
            return []
        k = nstamp[0]
        nstamp[0] += 1
        names.append(name)
        assert k < 30
        o = []
        if k == 0:
            o += I(f"v_mov_b32 v{vDbg}, 0")
        if k >= 1:
            b = 84 + 4 * ((k - 1) % 2)
            o += I(f"v_writelane_b32 v{vDbg}, s{b}, {2*k-2}\nv_writelane_b32 v{vDbg}, s{b+2}, {2*k-1}")
        b = 84 + 4 * (k % 2)
        return o + I(f"s_memrealtime s[{b}:{b+1}]\ns_memtime s[{b+2}:{b+3}]")

    sX, sW, sWS, sR, sT, sO = 36, 40, 44, 48, 52, 56

    def srd(d, ptr, size):
        return I(f"""s_mov_b32 s{d}, s{ptr}
s_mov_b32 s{d+1}, s{ptr+1}
s_mov_b32 s{d+2}, {size}
s_mov_b32 s{d+3}, 0x20000""")

    def q4(b):
        return f"s[{b}:{b+3}]"

    sRB1, sCT, sL = 3, 22, 23
    sWv, sKK, sSX, sSW, sM0X, sM0W, sTAG, sT0, sT1, sT2 = [S.get() for _ in range(10)]
    vL, vC, vQ = V.get(), V.get(), V.get()
    t0, t1, t2, t3 = [V.get() for _ in range(4)]
    vPo = V.get(4, 2)
    a0, a1, a2 = V.get(), V.get(), V.get()
    vRl, vRl2, vTag = V.get(), V.get(), V.get()
    vDbg = V.get()
    assert vDbg == 18

    P += stamp("start")
    P += I(f"""
v_lshrrev_b32 v{t0}, 6, v0
v_and_b32 v{vL}, 63, v0
v_readfirstlane_b32 s{sWv}, v{t0}
v_and_b32 v{vC}, 15, v0
v_lshrrev_b32 v{vQ}, 4, v{vL}
""")
    P += I(f"""
s_and_b32 s{sT0}, s{sCT}, 3
s_lshl_b32 s{sT0}, s{sT0}, 2
s_lshr_b32 s{sT1}, s{sCT}, 2
s_add_u32 s{sT0}, s{sT0}, s{sT1}
s_add_u32 s{sT0}, s{sT0}, s{sRB1}
s_mul_i32 s{sT1}, s{sT0}, 205
s_lshr_b32 s{sT1}, s{sT1}, 11
s_mul_i32 s{sT1}, s{sT1}, 10
s_sub_u32 s{sKK}, s{sT0}, s{sT1}
s_lshl_b32 s{sM0X}, s{sWv}, 12
s_mul_i32 s{sM0W}, s{sWv}, 6144
s_add_u32 s{sM0W}, s{sM0W}, {L_W}
""")
    vSt = 160
    vStA = 170
    P += I(f"""
s_lshl_b32 s{sT0}, s{sRB1}, 7
s_lshl_b32 s{sT1}, s{sCT}, 3
s_add_u32 s{sT0}, s{sT0}, s{sT1}
s_lshl_b32 s{sT1}, s{sWv}, 1
s_add_u32 s{sT0}, s{sT0}, s{sT1}
v_lshrrev_b32 v{t0}, 5, v{vL}
v_add_u32 v{vStA}, s{sT0}, v{t0}
v_and_b32 v{t1}, 31, v{vL}
v_mul_u32_u24 v{t0}, 1280, v{vStA}
v_lshl_add_u32 v{t2}, v{t1}, 4, v{t0}
v_lshl_add_u32 v{t3}, v{t1}, 3, v{t0}
""")
    vXo = [vRl2] + [V.get() for _ in range(3)]
    vWo = [V.get() for _ in range(6)]
    pre = []
    pre += I(f"""
v_lshrrev_b32 v{a0}, 3, v{vL}
v_and_b32 v{a1}, 7, v{vL}
s_lshl_b32 s{sT0}, s{sRB1}, 7
""")
    for j in range(4):
        r = vXo[j]
        if not ssm:
            pre += I(f"""
s_lshl_b32 s{sT1}, s{sWv}, 5
s_add_u32 s{sT1}, s{sT1}, s{sT0}
s_add_u32 s{sT1}, s{sT1}, {8*j}
v_add_u32 v{r}, s{sT1}, v{a0}
""")
        else:
            pre += I(f"""
s_lshr_b32 s{sT1}, s{sWv}, 1
s_lshl_b32 s{sT1}, s{sT1}, 6
s_and_b32 s{sT2}, s{sWv}, 1
s_lshl_b32 s{sT2}, s{sT2}, 3
s_add_u32 s{sT1}, s{sT1}, s{sT2}
s_add_u32 s{sT1}, s{sT1}, s{sT0}
s_add_u32 s{sT1}, s{sT1}, {32*(j&1) + 4*(j>>1)}
v_lshrrev_b32 v{a2}, 5, v{vL}
v_and_b32 v{r}, 3, v{a0}
v_lshl_add_u32 v{r}, v{a2}, 4, v{r}
v_add_u32 v{r}, s{sT1}, v{r}
""")
        pre += I(f"""
v_mul_u32_u24 v{r}, 1280, v{r}
v_lshrrev_b32 v{a2}, 1, v{a0}
v_xor_b32 v{a2}, {4*(j&1)}, v{a2}
v_xor_b32 v{a2}, v{a1}, v{a2}
v_lshl_add_u32 v{r}, v{a2}, 4, v{r}
""")
        if j:
            pre += I(f"v_subrev_u32 v{r}, {1024*j}, v{r}")
    sCH0 = S.get()
    if ssm:
        pre += I(f"""
s_sub_u32 s{sT1}, s{sCT}, 9
s_mul_i32 s{sCH0}, s{sT1}, 96
s_min_u32 s{sCH0}, s{sCH0}, 544
s_lshr_b32 s{sT1}, s{sWv}, 1
s_mul_i32 s{sT1}, s{sT1}, 48
s_add_u32 s{sT1}, s{sT1}, s{sCH0}
""")
        for j in range(6):
            r = vWo[j]
            pre += I(f"""
v_add_u32 v{r}, s{sT1}, v{a0}
v_mul_u32_u24 v{r}, 1280, v{r}
v_lshrrev_b32 v{a2}, 1, v{a0}
v_xor_b32 v{a2}, {4*(j&1)}, v{a2}
v_xor_b32 v{a2}, v{a1}, v{a2}
v_lshl_add_u32 v{r}, v{a2}, 4, v{r}
""")
            if j:
                pre += I(f"v_add_u32 v{r}, {8*j*1280 - 1024*(j%3)}, v{r}")
    else:
        pre += I(f"""
s_mul_i32 s{sT1}, s{sCT}, 384
s_mul_i32 s{sT2}, s{sWv}, {16*3456}
s_add_u32 s{sT1}, s{sT1}, s{sT2}
""")
        for j in range(6):
            r = vWo[j]
            pre += I(f"""
v_add_u32 v{a0}, {64*j}, v{vL}
v_mul_u32_u24 v{a1}, 2731, v{a0}
v_lshrrev_b32 v{a1}, 16, v{a1}
v_mul_u32_u24 v{a2}, 24, v{a1}
v_sub_u32 v{a0}, v{a0}, v{a2}
v_and_b32 v{a2}, 2, v{a1}
v_xor_b32 v{a0}, v{a0}, v{a2}
v_lshrrev_b32 v{a2}, 1, v{a1}
v_and_b32 v{a2}, 4, v{a2}
v_xor_b32 v{a0}, v{a0}, v{a2}
v_mul_u32_u24 v{r}, 3456, v{a1}
v_lshl_add_u32 v{r}, v{a0}, 4, v{r}
v_add_u32 v{r}, s{sT1}, v{r}
""")
            if j % 3:
                pre += I(f"v_subrev_u32 v{r}, {1024*(j%3)}, v{r}")
    P += pre
    P += srd(sX, 4, 2048 * 1280)
    P += I(f"""
buffer_load_dwordx4 v[{vSt}:{vSt+3}], v{t2}, {q4(sX)}, 0 offen
buffer_load_dwordx4 v[{vSt+4}:{vSt+7}], v{t2}, {q4(sX)}, 0 offen offset:512
buffer_load_dwordx2 v[{vSt+8}:{vSt+9}], v{t3}, {q4(sX)}, 0 offen offset:1024
s_load_dword s{sTAG}, s[34:35], {WS_EPOCH}
""")
    if ssm:
        P += I(f"""
s_bitcmp1_b32 s{sWv}, 0
s_cselect_b32 s{sW}, s12, s10
s_cselect_b32 s{sW+1}, s13, s11
s_mov_b32 s{sW+2}, {640*1280}
s_mov_b32 s{sW+3}, 0x20000
s_cselect_b32 s{sR}, s16, s14
s_cselect_b32 s{sR+1}, s17, s15
s_mov_b32 s{sR+2}, {640*1280}
s_mov_b32 s{sR+3}, 0x20000
""")
        vPar = 200
        P += I(f"""
s_and_b32 s{sT1}, s{sWv}, 1
s_mul_i32 s{sT1}, s{sT1}, 48
s_add_u32 s{sT1}, s{sT1}, s{sCH0}
v_add_u32 v{a0}, s{sT1}, v{vC}
v_lshlrev_b32 v{a0}, 1, v{a0}
""")
        for k, ptr in enumerate((6, 8, 18)):
            P += srd(sT, ptr, 1280)
            for n in range(3):
                P += I(f"buffer_load_ushort v{vPar+3*k+n}, v{a0}, {q4(sT)}, 0 offen offset:{32*n}")
    else:
        P += srd(sW, 24, 640 * 3456)
        P += srd(sR, 28, 1728 * 1280)
    P += srd(sWS, 34, WS_SIZE)
    P += srd(sO, 32, 2048 * 2560)

    WSTEP = 128 if ssm else 64 * 3456

    def dma(i):
        slot = i % 3
        g = []
        head = I(f"""s_lshl_b32 s{sSX}, s{sKK}, 7
s_add_u32 m0, s{sM0X}, {slot*16384}""")
        if not ssm:
            head = I(f"s_mul_i32 s{sSW}, s{sKK}, {WSTEP}") + head
        sw = sSX if ssm else sSW
        for j in range(4):
            x = I(f"buffer_load_dwordx4 v{vXo[j]}, {q4(sX)}, s{sSX} offen offset:{1024*j} lds")
            g.append((head if j == 0 else []) + x)
        for j in range(6):
            h = []
            if j % 3 == 0:
                h = I(f"s_add_u32 m0, s{sM0W}, {slot*24576 + 1024*j}")
                if j == 0:
                    h += I(f"s_add_u32 s{sKK}, s{sKK}, 1")
                else:
                    h += I(f"s_cmp_eq_u32 s{sKK}, 10\ns_cselect_b32 s{sKK}, 0, s{sKK}")
            g.append(h + I(f"buffer_load_dwordx4 v{vWo[j]}, {q4(sW)}, s{sw} offen offset:{1024*(j%3)} lds"))
        return g

    D = [dma(i) for i in range(10)]
    P += D[0]
    P += I(f"""
v_lshlrev_b32 v{a0}, 21, v{vL}
v_add_u32 v{a0}, 0xff00, v{a0}
buffer_load_dword a255, v{a0}, {q4(sWS)}, 0 offen
buffer_load_dword a255, v{a0}, {q4(sO)}, 0 offen
s_getpc_b64 s[{sT}:{sT+1}]
L_{T}_pc:
s_mov_b32 s{sT+2}, L_{T}_end-L_{T}_pc
s_mov_b32 s{sT+3}, 0x20000
v_lshlrev_b32 v{a0}, 7, v0
buffer_load_dword a255, v{a0}, {q4(sT)}, 0 offen
""")
    vU = 172
    st = []
    for k in range(10):
        st += I(f"v_lshlrev_b32 v{vU+2*k}, 16, v{vSt+k}\nv_and_b32 v{vU+2*k+1}, 0xffff0000, v{vSt+k}")
    acc = vSt
    st += I(f"v_pk_add_f32 v[{acc}:{acc+1}], v[{vU}:{vU+1}], v[{vU+2}:{vU+3}]")
    for k in range(2, 10):
        st += I(f"v_pk_add_f32 v[{acc}:{acc+1}], v[{acc}:{acc+1}], v[{vU+2*k}:{vU+2*k+1}]")

    def red32(r, tmp):
        o = []
        for sh in (8, 4, 2, 1):
            o += I(f"v_add_f32_dpp v{r}, v{r}, v{r} row_ror:{sh} row_mask:0xf bank_mask:0xf")
        o += I(f"v_mov_b32 v{tmp}, v{r}\nv_permlane16_swap_b32 v{r}, v{tmp}\nv_add_f32 v{r}, v{r}, v{tmp}")
        return o
    m = vSt + 2
    st += I(f"v_add_f32 v{m}, v{acc}, v{acc+1}")
    st += red32(m, m + 1)
    st += I(f"v_mul_f32 v{m}, {f32(1/640)}, v{m}")
    for k in range(10):
        st += I(f"v_pk_add_f32 v[{vU+2*k}:{vU+2*k+1}], v[{vU+2*k}:{vU+2*k+1}], v[{m}:{m+1}] op_sel_hi:[1,0] neg_lo:[0,1] neg_hi:[0,1]")
    st += I(f"v_pk_mul_f32 v[{acc}:{acc+1}], v[{vU}:{vU+1}], v[{vU}:{vU+1}]")
    for k in range(1, 10):
        st += I(f"v_pk_fma_f32 v[{acc}:{acc+1}], v[{vU+2*k}:{vU+2*k+1}], v[{vU+2*k}:{vU+2*k+1}], v[{acc}:{acc+1}]")
    va = vSt + 4
    st += I(f"v_add_f32 v{va}, v{acc}, v{acc+1}")
    st += red32(va, va + 1)

    def rbf(r):
        return I(f"v_cvt_pk_bf16_f32 v{r}, v{r}, v{r}\nv_lshlrev_b32 v{r}, 16, v{r}")
    st += I(f"v_mul_f32 v{va}, {f32(1/640)}, v{va}")
    st += rbf(va) + rbf(m)
    st += I(f"v_add_f32 v{va}, {f32(1e-5)}, v{va}")
    st += rbf(va)
    st += I(f"v_sqrt_f32 v{va}, v{va}")
    st += rbf(va)
    st += I(f"""v_rcp_f32 v{va}, v{va}
v_lshrrev_b32 v{t0}, 3, v{vStA}
v_and_b32 v{t2}, 7, v{vStA}
v_mul_f32 v{va+1}, v{m}, v{va}
v_lshlrev_b32 v{t0}, 7, v{t0}
v_lshl_add_u32 v{t0}, v{t2}, 3, v{t0}
v_add_u32 v{t0}, {WS_STATS}, v{t0}
v_cmp_eq_u32 vcc, 0, v{t1}
v_mov_b32 v{t2}, {OOB}
v_cndmask_b32 v{t0}, v{t2}, v{t0}, vcc""")
    st_store = I(f"buffer_store_dwordx2 v[{va}:{va+1}], v{t0}, {q4(sWS)}, 0 offen sc1")
    st += st_store
    st += I(f"s_mul_i32 s{sTAG}, s{sTAG}, 1664525\ns_add_u32 s{sTAG}, s{sTAG}, 1013904223")

    vbX = [V.get(), V.get()]
    st += I(f"""
s_lshr_b32 s{sT0}, s{sWv}, 1
s_lshl_b32 s{sT0}, s{sT0}, 13
v_lshrrev_b32 v{a0}, 1, v{vC}
v_xor_b32 v{a0}, v{vQ}, v{a0}
v_lshlrev_b32 v{a1}, 7, v{vC}
v_lshl_add_u32 v{a1}, v{a0}, 4, v{a1}
v_add_u32 v{vbX[0]}, s{sT0}, v{a1}
v_xor_b32 v{vbX[1]}, 64, v{vbX[0]}
""")
    if ssm:
        vbW = [V.get(), V.get()]
        st += I(f"""
s_and_b32 s{sT0}, s{sWv}, 1
s_mul_i32 s{sT0}, s{sT0}, 12288
s_add_u32 s{sT0}, s{sT0}, {L_W}
v_add_u32 v{vbW[0]}, s{sT0}, v{a1}
v_xor_b32 v{vbW[1]}, 64, v{vbW[0]}
""")
    else:
        vbW = [V.get() for _ in range(6)]
        st += I(f"""
v_bfe_u32 v{a0}, v{vL}, 2, 2
v_lshl_add_u32 v{a1}, v{vQ}, 3, v{a0}
v_mul_u32_u24 v{a1}, 384, v{a1}
v_and_b32 v{a2}, 1, v{vL}
v_lshl_add_u32 v{a1}, v{a2}, 3, v{a1}
v_add_u32 v{a1}, {L_W}, v{a1}
v_and_b32 v{a0}, 2, v{a0}
v_and_b32 v{a2}, 1, v{vQ}
v_lshl_or_b32 v{a0}, v{a2}, 2, v{a0}
v_bfe_u32 v{a2}, v{vL}, 1, 1
s_and_b32 s{sT0}, s{sWv}, 1
s_mul_i32 s{sT0}, s{sT0}, 12
v_add_u32 v{a2}, s{sT0}, v{a2}
""")
        for ft in range(6):
            st += I(f"""
v_add_u32 v{vbW[ft]}, {2*ft}, v{a2}
v_xor_b32 v{vbW[ft]}, v{vbW[ft]}, v{a0}
v_lshl_add_u32 v{vbW[ft]}, v{vbW[ft]}, 4, v{a1}
""")
    if ssm:
        A, B = vU, vU + 3
        n1, n2, wa, wb = vU + 6, vU + 7, vU + 8, vU + 9
        o = vU + 10
        u0, u1, u2 = vU + 12, vU + 13, vU + 14
        cf = vU + 16
        tb = []
        tb += I(f"""
s_lshr_b32 s{sT0}, s{sWv}, 1
s_lshl_b32 s{sT0}, s{sT0}, 2
v_add_u32 v{u0}, s{sT0}, v{vQ}
v_lshlrev_b32 v{n1}, 8, v{u0}
v_cvt_f32_u32 v{n1}, v{n1}
v_subrev_u32 v{u1}, 1, v{u0}
v_lshlrev_b32 v{u1}, 4, v{u1}
v_add_u32 v{u2}, 1, v{u0}
v_cmp_gt_u32 vcc, 2, v{u0}
v_cndmask_b32 v{n2}, v{u1}, v{u2}, vcc
v_cvt_f32_u32 v{n2}, v{n2}
s_and_b32 s{sT1}, s{sWv}, 1
s_mul_i32 s{sT1}, s{sT1}, 384
s_add_u32 s{sT1}, s{sT1}, {L_TAB}
v_mul_u32_u24 v{wa}, 768, v{u0}
v_lshl_add_u32 v{u1}, v{vC}, 3, s{sT1}
v_add_u32 v{wa}, v{wa}, v{u1}
v_add_u32 v{wb}, {14*768}, v{u1}
v_mov_b32 v{u2}, {L_SEG}
v_cmp_eq_u32 vcc, 0, v{u0}
v_cndmask_b32 v{wb}, v{u2}, v{wb}, vcc
v_add_u32 v{t3}, {8*768}, v{wa}
v_cmp_eq_u32 vcc, 6, v{u0}
v_cndmask_b32 v{t3}, v{t3}, v{u2}, vcc
v_cmp_gt_u32 vcc, 6, v{u0}
""")
        for n in range(3):
            lre, lim, ldt = vPar + n, vPar + 3 + n, vPar + 6 + n
            tb += I(f"""
v_lshlrev_b32 v{lre}, 16, v{lre}
v_lshlrev_b32 v{lim}, 16, v{lim}
v_lshlrev_b32 v{ldt}, 16, v{ldt}
v_mul_f32 v{ldt}, {f32(math.log2(math.e))}, v{ldt}
v_exp_f32 v{ldt}, v{ldt}
""") + rbf(ldt) + I(f"""
v_mul_f32 v{A+n}, v{ldt}, v{lre}
v_mul_f32 v{B+n}, v{ldt}, v{lim}
v_mul_f32 v{A+n}, {f32(math.log2(math.e))}, v{A+n}
v_mul_f32 v{B+n}, {f32(1/(2*math.pi))}, v{B+n}
""")
            for which, N in enumerate((n1, n2)):
                tb += I(f"""
v_mul_f32 v{u0}, v{N}, v{A+n}
v_mul_f32 v{u1}, v{N}, v{B+n}
v_exp_f32 v{u0}, v{u0}
v_fract_f32 v{u1}, v{u1}
v_cos_f32 v{o}, v{u1}
v_sin_f32 v{o+1}, v{u1}
""")
                if which == 1:
                    tb += I(f"v_cndmask_b32 v{u0}, 0, v{u0}, vcc")
                tb += I(f"""
v_mul_f32 v{o}, v{o}, v{u0}
v_mul_f32 v{o+1}, v{o+1}, v{u0}
""")
                if which == 0:
                    tb += I(f"ds_write_b64 v{wa}, v[{o}:{o+1}] offset:{128*n}")
                else:
                    tb += I(f"ds_write_b64 v{t3}, v[{o}:{o+1}] offset:{128*n}")
            tb += I(f"""
v_add_f32 v{o}, -1.0, v{o}
v_mul_f32 v{u0}, v{lre}, v{lre}
v_fmac_f32 v{u0}, v{lim}, v{lim}
v_rcp_f32 v{u0}, v{u0}
v_mul_f32 v{cf}, v{o}, v{lre}
v_mul_f32 v{cf+1}, v{o+1}, v{lre}
v_fmac_f32 v{cf}, v{o+1}, v{lim}
v_fma_f32 v{cf+1}, -v{o}, v{lim}, v{cf+1}
v_add_f32 v{u0}, v{u0}, v{u0}
v_mul_f32 v{cf}, v{cf}, v{u0}
v_mul_f32 v{cf+1}, v{cf+1}, v{u0}
ds_write_b64 v{wb}, v[{cf}:{cf+1}] offset:{128*n}
""")
        st += tb
    P += stamp("d0iss")
    P += spread(st, D[1], 8, len(st) - 4)
    P += stamp("stats")

    vF = [80, 120]
    vA = 160
    vCS = 56
    aOne = 240
    P += I(f"v_mov_b32 v{a0}, 0x3f803f80")
    P += I("\n".join(f"v_accvgpr_write_b32 a{aOne+k}, v{a0}" for k in range(4)))

    def acc_(m, y):
        return vA + 4 * (6 * m + y)

    def reads(s):
        slot, h, b = (s // 2) % 3, s % 2, vF[s % 2]
        xs = [I(f"ds_read_b128 v[{b+4*m}:{b+4*m+3}], v{vbX[h]} offset:{slot*16384 + m*2048}") for m in range(4)]
        ws = []
        for y in range(6):
            r = b + 16 + 4 * y
            if ssm:
                ws.append(I(f"ds_read_b128 v[{r}:{r+3}], v{vbW[h]} offset:{slot*24576 + (y&1)*6144 + (y>>1)*2048}"))
            else:
                for e in range(2):
                    ws.append(I(f"ds_read_b64_tr_b16 v[{r+2*e}:{r+2*e+1}], v{vbW[y]} offset:{slot*24576 + h*12288 + e*1536}"))
        k = 1 if ssm else 2
        return ws[:k] + xs + ws[k:]

    def mfmas(s):
        b = vF[s % 2]
        o = []
        for y in range(6):
            w = vr(b + 16 + 4 * y, 4)
            for m in range(5):
                x = vr(b + 4 * m, 4) if m < 4 else vr(aOne, 4, 'a')
                d = vr(acc_(m, y), 4) if m < 4 else vr(vCS + 4 * y, 4)
                c = d if s else "0"
                o.append(I(f"v_mfma_f32_16x16x32_bf16 {d}, {x}, {w}, {c}" if ssm else f"v_mfma_f32_16x16x32_bf16 {d}, {w}, {x}, {c}"))
        return o

    fill = [[] for _ in range(20)]
    head = [[] for _ in range(20)]
    barw = [[] for _ in range(20)]
    for i in range(2, 10):
        if i == 2:
            fill[0] += D[2]
        else:
            fill[2 * i - 5] += D[i][:5]
            fill[2 * i - 4] += D[i][5:]

    sRO = 4
    P += I(f"v_lshlrev_b32 v{vRl}, 4, v{vL}")
    if not ssm:
        sRI = 5
        g = I(f"""
s_lshr_b32 s{sT0}, s{sL}, 3
s_and_b32 s{sT1}, s{sL}, 7
s_mul_i32 s{sT2}, s{sT0}, 3
s_add_u32 s{sT2}, s{sT2}, s{sWv}
s_mul_i32 s{sT2}, s{sT2}, {32*1280}
s_mul_i32 s{sRI}, s{sT1}, 160
s_add_u32 s{sRI}, s{sRI}, s{sT2}
s_mul_i32 s{sT2}, s{sWv}, 18
s_add_u32 s{sT2}, s{sT2}, s{sT0}
s_mul_i32 s{sT1}, s{sT1}, 96
s_add_u32 s{sT2}, s{sT2}, s{sT1}
s_mul_i32 s{sRO}, s{sT2}, 5120
s_add_u32 s{sRO}, s{sRO}, {WS_WP}
s_cmp_eq_u32 s{sWv}, 3
s_cselect_b32 s{sRI}, {OOB}, s{sRI}
s_cselect_b32 s{sRO}, {OOB}, s{sRO}
v_mul_u32_u24 v{a0}, {4*1280}, v{vQ}
v_lshl_add_u32 v{a1}, v{vC}, 1, v{a0}
v_lshl_add_u32 v{a0}, v{vC}, 3, v{a0}
v_add_u32 v{t0}, {16*1280}, v{a0}
v_add_u32 v{t1}, {16*1280}, v{a1}
s_mov_b32 s{sT0}, 0x05040100
s_mov_b32 s{sT1}, 0x07060302
""")
        P += g
        vRi = V.get(16, 2)
        vRs = [t2, t3, a2, vTag] + [vPo + k for k in range(4)]
        lds_ = []
        for j in range(8):
            lds_.append(I(f"buffer_load_dwordx2 v[{vRi+2*j}:{vRi+2*j+1}], v{a0 if j < 4 else t0}, {q4(sR)}, s{sRI} offen offset:{(j%4)*1280}"))
        for j in range(8):
            lds_.append(I(f"buffer_load_ushort v{vRs[j]}, v{a1 if j < 4 else t1}, {q4(sR)}, s{sRI} offen offset:{(j%4)*1280 + 128}"))
        fill[cfg.rel_ld] += lds_
        vRo = V.get(4, 2)
        pr, rel_st = [], []
        for nt in range(5):
            for jj in range(4):
                if nt < 4:
                    lo, hi = vRi + 4 * jj + (nt >> 1), vRi + 4 * jj + 2 + (nt >> 1)
                    pr.append(I(f"v_perm_b32 v{vRo+jj}, v{hi}, v{lo}, s{sT1 if nt & 1 else sT0}"))
                else:
                    pr.append(I(f"v_lshl_or_b32 v{vRo+jj}, v{vRs[2*jj+1]}, 16, v{vRs[2*jj]}"))
            x = I(f"buffer_store_dwordx4 v[{vRo}:{vRo+3}], v{vRl}, {q4(sWS)}, s{sRO} offen offset:{1024*(nt%4)} sc1")
            if nt == 3:
                x += I(f"s_add_u32 s{sRO}, s{sRO}, 4096")
            rel_st.append(x[0])
            pr.append(x)
        h = len(pr) // 2
        fill[cfg.rel_proc] += pr[:h]
        fill[cfg.rel_proc + 1] += pr[h:]
        rel_free = lambda: (V.put(vRi, 16), V.put(vRo, 4))
    else:
        sRI = 5
        vRc = [vTag] + [vPo + k for k in range(4)]
        g = I(f"""
s_sub_u32 s{sT0}, s{sL}, 144
s_and_b32 s{sT1}, s{sT0}, 7
s_lshr_b32 s{sT0}, s{sT0}, 3
s_mul_i32 s{sRI}, s{sT1}, {80*1280}
s_lshl_b32 s{sT2}, s{sT0}, 7
s_add_u32 s{sRI}, s{sRI}, s{sT2}
s_lshl_b32 s{sT2}, s{sT0}, 2
s_add_u32 s{sT2}, s{sT2}, s{sWv}
s_mul_i32 s{sT1}, s{sT1}, 96
s_add_u32 s{sT2}, s{sT2}, s{sT1}
s_add_u32 s{sT2}, s{sT2}, 56
s_mul_i32 s{sRO}, s{sT2}, 5120
s_add_u32 s{sRO}, s{sRO}, {WS_WP}
s_cmp_ge_u32 s{sT0}, 10
s_cselect_b32 s{sRI}, {OOB}, s{sRI}
s_cselect_b32 s{sRO}, {OOB}, s{sRO}
s_lshr_b32 s{sT0}, s{sWv}, 1
s_mul_i32 s{sT1}, s{sT0}, 40
v_lshrrev_b32 v{a0}, 3, v{vL}
v_add_u32 v{a0}, s{sT1}, v{a0}
v_and_b32 v{a1}, 7, v{vL}
s_mul_i32 s{sT0}, s{sT0}, 5120
s_and_b32 s{sT1}, s{sWv}, 1
s_mul_i32 s{sT1}, s{sT1}, 10240
s_add_u32 s{sT0}, s{sT0}, s{sT1}
s_add_u32 s{sT0}, s{sT0}, {L_CST}
""")
        for j in range(5):
            g += I(f"""
v_add_u32 v{a2}, {8*j}, v{a0}
v_mul_u32_u24 v{vRc[j]}, 1280, v{a2}
v_bfe_u32 v{a2}, v{a2}, 2, 3
v_xor_b32 v{a2}, v{a2}, v{a1}
v_lshl_add_u32 v{vRc[j]}, v{a2}, 4, v{vRc[j]}
""")
            if j % 4:
                g += I(f"v_subrev_u32 v{vRc[j]}, {1024*(j%4)}, v{vRc[j]}")
        g += I(f"""
v_lshrrev_b32 v{a0}, 1, v{vQ}
s_lshl_b32 s{sT1}, s{sWv}, 1
v_add_u32 v{a0}, s{sT1}, v{a0}
v_and_b32 v{a1}, 1, v{vQ}
v_lshlrev_b32 v{a1}, 3, v{a1}
v_add_u32 v{a1}, {L_CST}, v{a1}
v_and_b32 v{a2}, 7, v{vC}
v_xor_b32 v{a2}, v{a2}, v{a0}
v_lshl_add_u32 v{t0}, v{a2}, 4, v{a1}
v_lshl_add_u32 v{t0}, v{vC}, 9, v{t0}
v_lshrrev_b32 v{a2}, 2, v{vC}
v_xor_b32 v{a2}, v{a2}, v{a0}
v_lshl_add_u32 v{t1}, v{a2}, 4, v{a1}
v_lshl_add_u32 v{t1}, v{vC}, 7, v{t1}
""")
        P += g
        lds_ = []
        for j in range(5):
            h = I(f"s_add_u32 m0, s{sT0}, {4096*(j//4)}") if j % 4 == 0 else []
            lds_ += h + I(f"buffer_load_dwordx4 v{vRc[j]}, {q4(sR)}, s{sRI} offen offset:{1024*(j%4)} lds")
        assert cfg.rel_ld == 0 or cfg.rel_ld % 2 == 1
        head[cfg.rel_ld] += lds_
        rp = cfg.rel_proc | 1
        barw[rp] += [lds_[-1]]
        vRo = V.get(20, 2)
        pr, rel_st = [], []
        for nt in range(5):
            for part in range(2):
                r = vRo + 4 * nt + 2 * part
                pr.append(I(f"ds_read_b64 v[{r}:{r+1}], v{t0 if nt < 4 else t1} offset:{part*10240 + (nt*128 if nt < 4 else 64*128)}"))
        fill[rp] += pr
        pr = []
        for nt in range(5):
            r = vRo + 4 * nt
            x = I(f"buffer_store_dwordx4 v[{r}:{r+3}], v{vRl}, {q4(sWS)}, s{sRO} offen offset:{1024*(nt%4)} sc1")
            if nt == 3:
                x += I(f"s_add_u32 s{sRO}, s{sRO}, 4096")
            rel_st.append(x[0])
            pr.append(x)
        fill[rp + 1] += pr
        rel_free = lambda: V.put(vRo, 20)

    barw[cfg.f0_flag] += rel_st + st_store
    head[cfg.f0_flag] += I(f"""
s_lshl_b32 s{sT0}, s{sL}, 2
s_add_u32 s{sT0}, s{sT0}, {WS_F0}
v_mov_b32 v{vTag}, s{sTAG}
v_mov_b32 v{a0}, s{sT0}
v_mov_b32 v{a1}, {OOB}
v_cmp_eq_u32 vcc, 0, v0
v_cndmask_b32 v{a0}, v{a1}, v{a0}, vcc
buffer_store_dword v{vTag}, v{a0}, {q4(sWS)}, 0 offen sc1
""")
    rel_free()
    sCnt = 24
    pl = f"buffer_load_dwordx4 v[{vPo}:{vPo+3}], v{vRl}, {q4(sWS)}, s{sT2} offen sc1"
    fill[cfg.f0_poll] += [I(f"s_mov_b32 s{sT2}, {WS_F0}\n{pl}")]
    chk = f"""v_xor_b32 v{vPo}, s{sTAG}, v{vPo}
v_bitop3_b32 v{vPo}, v{vPo+1}, v{vTag}, v{vPo} bitop3:0xbe
v_bitop3_b32 v{vPo}, v{vPo+2}, v{vTag}, v{vPo} bitop3:0xbe
v_bitop3_b32 v{vPo}, v{vPo+3}, v{vTag}, v{vPo} bitop3:0xbe
v_cmp_ne_u32 vcc, 0, v{vPo}"""

    def poll_tail(lbl, load, check):
        return [Raw(f"""    s_cbranch_vccz L_{T}_{lbl}_ok
    s_mov_b32 s{sCnt}, 0
L_{T}_{lbl}_retry:
    {load}
    s_add_u32 s{sCnt}, s{sCnt}, 1
    s_waitcnt vmcnt(0)
    {check}
    s_cmp_ge_u32 s{sCnt}, {cfg.spin}
    s_cbranch_scc1 L_{T}_{lbl}_ok
    s_cbranch_vccnz L_{T}_{lbl}_retry
L_{T}_{lbl}_ok:""")]
    pc = cfg.f0_poll + 2
    head[pc] += I(chk) + poll_tail("f0", pl, chk)
    head[pc] += I(f"""
s_cmp_eq_u32 s2, 0
s_cselect_b32 s{sT0}, {WS_EPOCH}, {OOB}
v_lshlrev_b32 v{a0}, 24, v0
v_and_b32 v{a1}, 127, v0
v_lshrrev_b32 v{a2}, 3, v{a1}
v_and_b32 v{t0}, 7, v{a1}
v_lshlrev_b32 v{a2}, 7, v{a2}
v_lshl_add_u32 v{a2}, v{t0}, 3, v{a2}
s_lshl_b32 s{sT1}, s{sRB1}, 11
s_add_u32 s{sT1}, s{sT1}, {WS_STATS}
buffer_load_dwordx2 v[{vPo}:{vPo+1}], v{a2}, {q4(sWS)}, s{sT1} offen sc1
v_min_u32 v{a0}, 0x2000000, v{a0}
v_lshlrev_b32 v{a1}, 2, v{a1}
v_add_u32 v{a1}, {L_ST}, v{a1}
v_lshlrev_b32 v{a0}, 1, v{a0}
buffer_store_dword v{vTag}, v{a0}, {q4(sWS)}, s{sT0} offen sc1
""")
    fill[pc + 1] += [[], [], [], [], [], [], [], [], I(f"ds_write2_b32 v{a1}, v{vPo}, v{vPo+1} offset0:0 offset1:128")]

    sWP, sHA, sRB2, sCT2 = S.get(), S.get(), S.get(), S.get()
    P += I(f"""
s_and_b32 s{sRB2}, s2, 7
s_lshl_b32 s{sRB2}, s{sRB2}, 2
s_lshr_b32 s{sCT2}, s2, 6
s_add_u32 s{sRB2}, s{sRB2}, s{sCT2}
s_lshr_b32 s{sCT2}, s2, 3
s_and_b32 s{sCT2}, s{sCT2}, 7
s_mul_i32 s{sWP}, s{sCT2}, 96
s_add_u32 s{sWP}, s{sWP}, s{sWv}
s_mul_i32 s{sWP}, s{sWP}, 5120
s_add_u32 s{sWP}, s{sWP}, {WS_WP}
s_mul_i32 s{sHA}, s{sRB2}, 96
s_add_u32 s{sHA}, s{sHA}, s{sWv}
s_lshl_b32 s{sHA}, s{sHA}, 12
s_add_u32 s{sHA}, s{sHA}, {WS_HID}
""")
    sWo, sAo = sM0X, sM0W

    def wload(i):
        g = []
        b = 20 * (i % 12)
        h = I(f"s_add_u32 s{sWo}, s{sWP}, {i*4*5120}")
        if i == 13:
            h += I(f"s_cmp_ge_u32 s{sWv}, 2\ns_cselect_b32 s{sWo}, {OOB}, s{sWo}")
        for nt in range(5):
            x = I(f"buffer_load_dwordx4 a[{b+4*nt}:{b+4*nt+3}], v{vRl if nt < 4 else vRl2}, {q4(sWS)}, s{sWo} offen offset:{1024*(nt%4)} sc1")
            g.append((h if nt == 0 else []) + x)
        return g
    assert pc >= 15
    head[pc] += I(f"v_add_u32 v{vRl2}, 4096, v{vRl}")
    WL = [wload(i) for i in range(24)]
    wq = [x for i in range(12) for x in WL[i]]
    for s in range(pc, 20):
        fill[s] += wq[:5]
        wq = wq[5:]

    fb = vF[0]
    if not ssm:
        vB1 = V.get(12, 2)
        g = srd(sT, 26, 3456) + I(f"""
s_mul_i32 s{sT0}, s{sCT}, 384
s_and_b32 s{sT1}, s{sWv}, 1
s_mul_i32 s{sT1}, s{sT1}, 192
s_add_u32 s{sT0}, s{sT0}, s{sT1}
v_lshlrev_b32 v{t2}, 3, v{vQ}""")
        head[cfg.f0_flag + 2] += g
        for ft in range(6):
            fill[cfg.f0_flag + 2] += [I(f"buffer_load_dwordx2 v[{vB1+2*ft}:{vB1+2*ft+1}], v{t2}, {q4(sT)}, s{sT0} offen offset:{32*ft}")]
        vRS = fb
        vBf = fb + 8
        head[18] += I(f"""
s_lshr_b32 s{sT0}, s{sWv}, 1
s_lshl_b32 s{sT0}, s{sT0}, 8
s_add_u32 s{sT0}, s{sT0}, {L_ST}
v_lshl_add_u32 v{t2}, v{vC}, 2, s{sT0}""")
        for m in range(4):
            fill[19] += [I(f"ds_read2_b32 v[{vRS+2*m}:{vRS+2*m+1}], v{t2} offset0:{16*m} offset1:{128+16*m}")]
        for k in range(12):
            fill[19] += [I(f"v_lshlrev_b32 v{vBf+2*k}, 16, v{vB1+k}"), I(f"v_and_b32 v{vBf+2*k+1}, 0xffff0000, v{vB1+k}")]
    else:
        vRS, vMR = fb, fb + 16
        head[18] += I(f"""
s_lshr_b32 s{sT0}, s{sWv}, 1
s_lshl_b32 s{sT0}, s{sT0}, 8
s_add_u32 s{sT0}, s{sT0}, {L_ST}
v_lshl_add_u32 v{t2}, v{vQ}, 6, s{sT0}
s_and_b32 s{sT1}, s{sWv}, 1
s_mul_i32 s{sT1}, s{sT1}, 384
s_add_u32 s{sT1}, s{sT1}, {L_TAB}
v_lshl_add_u32 v{t3}, v{vC}, 3, s{sT1}""")
        for k in range(4):
            fill[19] += [I(f"ds_read_b128 v[{vRS+4*k}:{vRS+4*k+3}], v{t2} offset:{16*k}"),
                         I(f"ds_read_b128 v[{vMR+4*k}:{vMR+4*k+3}], v{t2} offset:{512+16*k}")]
        vCo, vLam = V.get(6, 2), V.get(6, 2)
        for n in range(3):
            fill[19] += [I(f"ds_read_b64 v[{vCo+2*n}:{vCo+2*n+1}], v{t3} offset:{14*768+128*n}"),
                         I(f"ds_read_b64 v[{vLam+2*n}:{vLam+2*n+1}], v{t3} offset:{8*768+128*n}")]

    P += [Wait([D[0][-1][-1]], lgkm0=True)] + I("s_barrier") + stamp("slab0") + reads(0)
    for s in range(20):
        if s % 2 == 1 and s < 19:
            P += [Wait([D[s // 2 + 1][-1][-1]] + barw[s], lgkm0=True)] + I("s_barrier") + stamp(f"b{s}")
        else:
            assert not barw[s]
        mf = mfmas(s)
        rd = reads(s + 1) if s < 19 else []
        body = spread(mf, rd, 0, 22)
        body = spread(body, fill[s], 1, 29)
        P += [body[0], head[s], body[1:]]
    P += stamp("p1end")
    for r in vXo[1:] + vWo + vbX + vbW:
        V.put(r)
    V.put(vF[1], 40)

    sHS = 25
    hid_st = []
    if not ssm:
        V.put(vB1, 12)
        P += I(f"""
s_lshl_b32 s{sT0}, s{sRB1}, 1
s_lshr_b32 s{sT1}, s{sWv}, 1
s_add_u32 s{sT0}, s{sT0}, s{sT1}
s_mul_i32 s{sT0}, s{sT0}, 96
s_lshl_b32 s{sT1}, s{sCT}, 1
s_add_u32 s{sT0}, s{sT0}, s{sT1}
s_and_b32 s{sT1}, s{sWv}, 1
s_add_u32 s{sT0}, s{sT0}, s{sT1}
s_lshl_b32 s{sT0}, s{sT0}, 12
s_add_u32 s{sHS}, s{sT0}, {WS_HID}
""")
        K0 = -2 * math.sqrt(2 / math.pi) * math.log2(math.e)
        vK = V.get(2, 2)
        P += I(f"v_mov_b32 v{vK}, {f32(K0*0.044715)}\nv_mov_b32 v{vK+1}, {f32(K0)}")
        tmp = [V.get(8, 2) for _ in range(2)]
        outq = [V.get(4, 2) for _ in range(2)]
        ep = []
        for j in range(3):
            for m in range(4):
                z, e = tmp
                o = outq[m & 1]
                prs = [(acc_(m, 2 * j + (k >> 1)) + 2 * (k & 1), 4 * (2 * j + (k >> 1)) + 2 * (k & 1)) for k in range(4)]
                rs = f"v[{vRS+2*m}:{vRS+2*m+1}]"
                p2 = lambda r: f"v[{r}:{r+1}]"
                for k, (a, c) in enumerate(prs):
                    ep += I(f"v_pk_fma_f32 {p2(z+2*k)}, {rs}, {p2(vCS+c)}, {p2(vBf+c)} op_sel:[1,0,0] op_sel_hi:[1,1,1] neg_lo:[1,0,0] neg_hi:[1,0,0]")
                for k, (a, c) in enumerate(prs):
                    ep += I(f"v_pk_fma_f32 {p2(a)}, {rs}, {p2(a)}, {p2(z+2*k)} op_sel:[0,0,0] op_sel_hi:[0,1,1]")
                for k, (a, c) in enumerate(prs):
                    ep += I(f"v_pk_mul_f32 {p2(z+2*k)}, {p2(a)}, {p2(a)}")
                for k, (a, c) in enumerate(prs):
                    ep += I(f"v_pk_fma_f32 {p2(z+2*k)}, {p2(z+2*k)}, {p2(vK)}, {p2(vK)} op_sel:[0,0,1] op_sel_hi:[1,0,1]")
                for k, (a, c) in enumerate(prs):
                    ep += I(f"v_pk_mul_f32 {p2(z+2*k)}, {p2(z+2*k)}, {p2(a)}")
                for k in range(8):
                    ep += I(f"v_exp_f32 v{e+k}, v{z+k}")
                for k in range(4):
                    ep += I(f"v_pk_add_f32 {p2(e+2*k)}, {p2(e+2*k)}, 1.0 op_sel_hi:[1,0]")
                for k in range(8):
                    ep += I(f"v_rcp_f32 v{e+k}, v{e+k}")
                for k, (a, c) in enumerate(prs):
                    ep += I(f"v_pk_mul_f32 {p2(a)}, {p2(a)}, {p2(e+2*k)}")
                for k, (a, c) in enumerate(prs):
                    ep += I(f"v_cvt_pk_bf16_f32 v{o+k}, v{a}, v{a+1}")
                x = I(f"buffer_store_dwordx4 v[{o}:{o+3}], v{vRl}, {q4(sWS)}, s{sHS} offen offset:{1024*m} sc1")
                hid_st += x
                ep += x
            if j < 2:
                ep += I(f"s_add_u32 s{sHS}, s{sHS}, {18*4096}")
        nw = len(wq) - 6
        P += spread(ep, wq[:nw])
        P += wq[nw:]
        wq = []
        V.put(vK, 2); [V.put(r, 8) for r in tmp]; [V.put(r, 4) for r in outq]
        V.put(vF[0], 40)
    else:
        p2 = lambda r: f"v[{r}:{r+1}]"
        ep = []
        tt = V.get(2, 2)
        for n in range(3):
            for part in range(2):
                y = 2 * n + part
                for m in range(4):
                    for h in range(2):
                        a = acc_(m, y) + 2 * h
                        ep += I(f"v_pk_mul_f32 {p2(tt)}, {p2(vMR+4*m+2*h)}, {p2(vCS+4*y)}")
                        ep += I(f"v_pk_fma_f32 {p2(a)}, {p2(vRS+4*m+2*h)}, {p2(a)}, {p2(tt)} neg_lo:[0,0,1] neg_hi:[0,0,1]")
        W = [[None] * 16 for _ in range(3)]
        spare = tt
        for n in range(3):
            co = p2(vCo + 2 * n)
            for m in range(4):
                for h in range(2):
                    re_, im_ = acc_(m, 2 * n) + 2 * h, acc_(m, 2 * n + 1) + 2 * h
                    tau = 4 * m + 2 * h
                    ep += I(f"""v_pk_mul_f32 {p2(spare)}, {co}, {p2(re_)} op_sel:[0,0] op_sel_hi:[1,0]
v_pk_mul_f32 {p2(re_)}, {co}, {p2(re_)} op_sel:[0,1] op_sel_hi:[1,1]
v_pk_fma_f32 {p2(spare)}, {co}, {p2(im_)}, {p2(spare)} op_sel:[1,0,0] op_sel_hi:[0,0,1] neg_lo:[1,0,0]
v_pk_fma_f32 {p2(re_)}, {co}, {p2(im_)}, {p2(re_)} op_sel:[1,1,0] op_sel_hi:[0,1,1] neg_lo:[1,0,0]""")
                    W[n][tau], W[n][tau + 1] = spare, re_
                    spare = im_

        def cfma(d, l, x, add, tmp_):
            return I(f"""v_pk_fma_f32 {p2(tmp_)}, {p2(l)}, {p2(x)}, {p2(add)} op_sel:[0,0,0] op_sel_hi:[0,1,1]
v_pk_fma_f32 {p2(d)}, {p2(l)}, {p2(x)}, {p2(tmp_)} op_sel:[1,1,0] op_sel_hi:[1,0,1] neg_lo:[1,0,0]""")

        def cmul(d, l, x, tmp_):
            return I(f"""v_pk_mul_f32 {p2(tmp_)}, {p2(l)}, {p2(x)} op_sel:[0,0] op_sel_hi:[0,1]
v_pk_fma_f32 {p2(d)}, {p2(l)}, {p2(x)}, {p2(tmp_)} op_sel:[1,1,0] op_sel_hi:[1,0,1] neg_lo:[1,0,0]""")
        vE = V.get(6, 2)
        vTm = V.get(2, 2)
        for n in range(3):
            ep += cfma(vE + 2 * n, vLam + 2 * n, W[n][0], W[n][1], vTm)
            for tau in range(2, 16):
                ep += cfma(vE + 2 * n, vLam + 2 * n, vE + 2 * n, W[n][tau], vTm)
        nw = 20
        P += spread(ep, wq[:nw])
        wq = wq[nw:]
        V.put(vF[0], 40)
        V.put(vCo, 6)
        vNb = V.get(18, 2)
        vWt = V.get(18, 2)
        vL16 = V.get(6, 2)
        vPx = V.get(6, 2)
        P += I(f"""
s_lshr_b32 s{sT0}, s{sWv}, 1
s_lshl_b32 s{sT0}, s{sT0}, 2
v_add_u32 v{a2}, s{sT0}, v{vQ}
v_mul_u32_u24 v{a0}, 768, v{a2}
v_add_u32 v{a0}, v{a0}, v{t3}
v_add_u32 v{a0}, {L_SEG - L_TAB}, v{a0}
""")
        for n in range(3):
            P += I(f"ds_write_b64 v{a0}, {p2(vE+2*n)} offset:{128*n}")
        for n in range(3):
            P += I(f"ds_read_b64 {p2(vL16+2*n)}, v{t3} offset:{10*768+128*n}")
        for d in range(1, 4):
            P += I(f"""
v_cmp_le_u32 vcc, {d}, v{vQ}
v_subrev_u32 v{a1}, {768*d}, v{a0}
v_add_u32 v{t0}, {15*768}, v{t3}
v_cndmask_b32 v{a1}, v{t0}, v{a1}, vcc
""")
            for n in range(3):
                P += I(f"ds_read_b64 {p2(vNb+6*(d-1)+2*n)}, v{a1} offset:{128*n}")
            if d == 3:
                for n in range(3):
                    P += I(f"ds_read_b64 {p2(vWt+2*n)}, v{t3} offset:{11*768+128*n}")
        for n in range(3):
            P += cfma(vPx + 2 * n, vL16 + 2 * n, vNb + 6 + 2 * n, vNb + 2 * n, vTm)
            P += cfma(vPx + 2 * n, vWt + 2 * n, vNb + 12 + 2 * n, vPx + 2 * n, vTm)
            P += cfma(vE + 2 * n, vL16 + 2 * n, vPx + 2 * n, vE + 2 * n, vTm)
        vTb = V.get()
        P += I(f"""
v_and_b32 v{t0}, 3, v{vC}
v_lshlrev_b32 v{t0}, 3, v{t0}
v_lshrrev_b32 v{vTb}, v{t0}, v{vTag}
v_and_b32 v{vTb}, 0xff, v{vTb}
s_sub_u32 s{sT0}, s{sCT}, 9
s_lshl_b32 s{sT0}, s{sT0}, 1
s_and_b32 s{sT1}, s{sWv}, 1
s_add_u32 s{sT0}, s{sT0}, s{sT1}
s_mul_i32 s{sT0}, s{sT0}, 384
s_add_u32 s{sT0}, s{sT0}, {WS_EG}
s_lshl_b32 s{sT1}, s{sRB1}, 1
s_lshr_b32 s{sT2}, s{sWv}, 1
s_add_u32 s{sT2}, s{sT2}, s{sT1}
s_mul_i32 s{sT2}, s{sT2}, {14*384}
s_add_u32 s{sT2}, s{sT2}, s{sT0}
v_lshlrev_b32 v{t0}, 3, v{vC}
v_mov_b32 v{t1}, {OOB}
v_cmp_eq_u32 vcc, 3, v{vQ}
v_cndmask_b32 v{t1}, v{t1}, v{t0}, vcc
v_mov_b32 v{t2}, 0xff
""")
        eg_st = []
        for n in range(3):
            P += I(f"v_bfi_b32 v{vNb+2*n}, v{t2}, v{vTb}, v{vE+2*n}\nv_mov_b32 v{vNb+2*n+1}, v{vE+2*n+1}")
            x = I(f"buffer_store_dwordx2 {p2(vNb+2*n)}, v{t1}, {q4(sWS)}, s{sT2} offen offset:{128*n} sc1")
            eg_st += x
            P += x
        P += stamp("Epub")
        for n in range(3):
            P += I(f"ds_write_b64 v{a0}, {p2(vE+2*n)} offset:{128*n}")
        vG = V.get(24, 2)
        vGa = [V.get() for _ in range(4)]
        vGt = [V.get() for _ in range(4)]
        for i in range(4):
            P += I(f"""
v_lshlrev_b32 v{a1}, 2, v{a2}
v_sub_u32 v{a1}, s{sT1}, v{a1}
v_subrev_u32 v{a1}, {1+i}, v{a1}
v_cmp_le_i32 vcc, 0, v{a1}
v_mul_u32_u24 v{a1}, {14*384}, v{a1}
v_add_u32 v{a1}, v{a1}, v{t0}
v_mov_b32 v{vGa[i]}, {OOB}
v_cndmask_b32 v{vGa[i]}, v{vGa[i]}, v{a1}, vcc
v_cndmask_b32 v{vGt[i]}, 0, v{vTb}, vcc
""")
        vL64, vLg, vLq = vWt, vWt + 6, vWt + 12
        P += I(f"""
v_mul_u32_u24 v{a1}, 768, v{a2}
v_add_u32 v{a1}, v{a1}, v{t3}
v_add_u32 v{t1}, 9, v{vQ}
v_cmp_eq_u32 vcc, 0, v{vQ}
v_cndmask_b32 v{t1}, v{t1}, v{vQ}, vcc
v_mul_u32_u24 v{t1}, 768, v{t1}
v_add_u32 v{t1}, v{t1}, v{t3}
""")
        for n in range(3):
            P += I(f"""ds_read_b64 {p2(vL64+2*n)}, v{t3} offset:{13*768+128*n}
ds_read_b64 {p2(vLg+2*n)}, v{a1} offset:{128*n}
ds_read_b64 {p2(vLq+2*n)}, v{t1} offset:{128*n}""")
        P += wq[:6]
        wq = wq[6:]
        P += [Wait(eg_st)]
        gl = "\n".join(f"buffer_load_dwordx2 {p2(vG+6*i+2*n)}, v{vGa[i]}, {q4(sWS)}, s{sT0} offen offset:{128*n} sc1" for i in range(4) for n in range(3))
        gc = f"v_xor_b32 v{a1}, v{vG}, v{vGt[0]}\n" + "\n".join(
            f"v_bitop3_b32 v{a1}, v{vG+6*i+2*n}, v{vGt[i]}, v{a1} bitop3:0xbe" for i in range(4) for n in range(3) if i + n) + \
            f"\nv_and_b32 v{a1}, 0xff, v{a1}\nv_cmp_ne_u32 vcc, 0, v{a1}"
        P += I(gl) + I(gc) + poll_tail("eg", gl.replace("\n", "\n    "), gc.replace("\n", "\n    "))
        P += stamp("Egot")
        vH = vNb
        for n in range(3):
            P += cfma(vH + 2 * n, vL64 + 2 * n, vG + 18 + 2 * n, vG + 12 + 2 * n, vTm)
            P += cfma(vH + 2 * n, vL64 + 2 * n, vH + 2 * n, vG + 6 + 2 * n, vTm)
            P += cfma(vH + 2 * n, vL64 + 2 * n, vH + 2 * n, vG + 2 * n, vTm)
            P += cmul(vH + 2 * n, vLg + 2 * n, vH + 2 * n, vTm)
        for k in range(6):
            P += I(f"v_mov_b32 v{vH+6+k}, v{vH+k}")
        for k in range(6):
            P += I(f"v_permlane32_swap_b32 v{vH+k}, v{vH+6+k}")
        for n in range(3):
            P += I(f"v_pk_add_f32 {p2(vH+2*n)}, {p2(vH+2*n)}, {p2(vH+6+2*n)}")
        for k in range(6):
            P += I(f"v_mov_b32 v{vH+6+k}, v{vH+k}")
        for k in range(6):
            P += I(f"v_permlane16_swap_b32 v{vH+k}, v{vH+6+k}")
        for n in range(3):
            P += I(f"v_pk_add_f32 {p2(vH+2*n)}, {p2(vH+2*n)}, {p2(vH+6+2*n)}")
        P += I(f"""
s_lshr_b32 s{sT0}, s{sWv}, 1
s_lshl_b32 s{sT0}, s{sT0}, 10
v_subrev_u32 v{a1}, {L_TAB - L_CST}, v{t3}
v_add_u32 v{a1}, s{sT0}, v{a1}
v_xor_b32 v{t1}, 1024, v{a1}
""")
        for n in range(3):
            P += I(f"ds_write_b64 v{a1}, {p2(vH+2*n)} offset:{128*n}")
        P += I(f"""
s_cmp_ge_u32 s{sWv}, 2
s_cselect_b32 s{sT0}, {13*768}, 0
s_cselect_b32 s{sT1}, {L_SEG - L_TAB + 3*768 - 15*768}, 0
s_add_u32 s{sT1}, s{sT1}, {15*768}
v_add_u32 v{t0}, s{sT0}, v{t3}
v_add_u32 v{t2}, s{sT1}, v{t3}
""")
        P += [Wait(lgkm0=True)] + I("s_barrier")
        for n in range(3):
            P += I(f"""ds_read_b64 {p2(vH+6+2*n)}, v{t1} offset:{128*n}
ds_read_b64 {p2(vG+2*n)}, v{t0} offset:{128*n}
ds_read_b64 {p2(vG+6+2*n)}, v{t2} offset:{128*n}""")
        for n in range(3):
            P += I(f"v_pk_add_f32 {p2(vH+2*n)}, {p2(vH+2*n)}, {p2(vH+6+2*n)}")
            P += cfma(vH + 2 * n, vG + 2 * n, vH + 2 * n, vG + 6 + 2 * n, vTm)
            P += cfma(vH + 2 * n, vLq + 2 * n, vH + 2 * n, vPx + 2 * n, vTm)
        LT, BLK = 16384, 16 * 144
        P += I(f"""
s_and_b32 s{sT0}, s{sWv}, 1
s_mul_i32 s{sT0}, s{sT0}, 16384
s_cmp_ge_u32 s{sWv}, 2
s_cselect_b32 s{sT1}, {73728 - 16384}, 0
s_add_u32 s{sT0}, s{sT0}, s{sT1}
s_add_u32 s{sT0}, s{sT0}, 16384
v_mul_u32_u24 v{a0}, 144, v{vC}
v_lshl_add_u32 v{a0}, v{vQ}, 5, v{a0}
v_add_u32 v{a0}, s{sT0}, v{a0}
v_lshrrev_b32 v{a1}, 2, v{vL}
v_mul_u32_u24 v{a1}, 144, v{a1}
v_and_b32 v{a2}, 3, v{vL}
v_lshl_add_u32 v{a1}, v{a2}, 3, v{a1}
v_add_u32 v{a1}, s{sT0}, v{a1}
s_lshl_b32 s{sT0}, s{sRB1}, 1
s_lshr_b32 s{sT1}, s{sWv}, 1
s_add_u32 s{sT0}, s{sT0}, s{sT1}
s_mul_i32 s{sT0}, s{sT0}, 96
s_lshr_b32 s{sT1}, s{sCH0}, 4
s_add_u32 s{sT0}, s{sT0}, s{sT1}
s_and_b32 s{sT1}, s{sWv}, 1
s_mul_i32 s{sT1}, s{sT1}, 3
s_add_u32 s{sT0}, s{sT0}, s{sT1}
s_add_u32 s{sT0}, s{sT0}, 56
s_lshl_b32 s{sT0}, s{sT0}, 12
s_add_u32 s{sHS}, s{sT0}, {WS_HID}
""")
        vPk = vG
        vTr = vCS
        ep = []
        pend = []
        for n in range(3):
            prev = vH + 2 * n
            blk = []
            for tau in range(16):
                blk += cfma(W[n][tau], vLam + 2 * n, prev, W[n][tau], W[n][tau])
                prev = W[n][tau]
            ep += flat(spread(blk, pend, 8, 30))
            for k in range(8):
                ep += I(f"v_cvt_pk_bf16_f32 v{vPk+k}, v{W[n][2*k]}, v{W[n][2*k+1]}")
                ep += I(f"v_cvt_pk_bf16_f32 v{vPk+8+k}, -v{W[n][2*k]+1}, -v{W[n][2*k+1]+1}")
            for part in range(2):
                for h in range(2):
                    r = vPk + 8 * part + 4 * h
                    ep += I(f"ds_write_b128 v{a0}, v[{r}:{r+3}] offset:{(2*n+part)*BLK + 16*h}")
            for tt_ in range(4):
                for part in range(2):
                    r = vTr + 4 * tt_ + 2 * part
                    ep += I(f"ds_read_b64_tr_b16 {p2(r)}, v{a1} offset:{(2*n+part)*BLK + 32*tt_}")
            pend = []
            for tt_ in range(4):
                r = vTr + 4 * tt_
                x = I(f"buffer_store_dwordx4 v[{r}:{r+3}], v{vRl}, {q4(sWS)}, s{sHS} offen offset:{1024*tt_} sc1")
                hid_st += x
                pend.append(x + (I(f"s_add_u32 s{sHS}, s{sHS}, 4096") if tt_ == 3 and n < 2 else []))
        ep += flat(pend)
        nw = max(0, len(wq) - 6)
        P += spread(ep, wq[:nw])
        P += wq[nw:]
        wq = []
        V.put(tt, 2); V.put(vE, 6); V.put(vTm, 2); V.put(vNb, 18); V.put(vWt, 18); V.put(vL16, 6); V.put(vPx, 6)
        V.put(vTb); V.put(vG, 24); [V.put(r) for r in vGa + vGt]; V.put(vLam, 6)
    P += stamp("epi")
    V.put(vA, 96); V.put(vCS, 24)
    assert all(r in V.free for r in range(19, 256)), sorted(set(range(19, 256)) - V.free)
    V.free = set(range(19, 32)) | {vL}
    P += I(f"""
s_lshl_b32 s{sT0}, s{sL}, 7
s_add_u32 s{sT0}, s{sT0}, {WS_F1}
v_lshlrev_b32 v{a0}, 2, v0
v_mov_b32 v{a1}, {OOB}
v_cmp_gt_u32 vcc, 32, v0
v_cndmask_b32 v{a0}, v{a1}, v{a0}, vcc
""")
    P += [Wait(hid_st)] + I("s_barrier")
    f1 = I(f"buffer_store_dword v{vTag}, v{a0}, {q4(sWS)}, s{sT0} offen sc1")
    P += f1
    P += stamp("f1")

    vAb, vAF, vAY = 32, 96, 176
    vAo = [V.get() for _ in range(4)]
    vFl = [V.get(), V.get()]
    vRW = [None] + [V.get() for _ in range(3)]
    P += I(f"""
s_lshr_b32 s{sT1}, s{sRB2}, 1
s_lshl_b32 s{sT1}, s{sT1}, 7
s_add_u32 s{sT1}, s{sT1}, {WS_F1}
v_min_u32 v{a1}, 8, v{vC}
v_lshl_add_u32 v{vFl[0]}, v{a1}, 11, s{sT1}
v_max_u32 v{a1}, 9, v{vC}
v_lshl_add_u32 v{vFl[1]}, v{a1}, 11, s{sT1}
""")
    for u in range(4):
        P += I(f"""
s_add_u32 s{sT0}, s{sWv}, {u}
s_and_b32 s{sT0}, s{sT0}, 3
s_lshl_b32 s{sT1}, s{sT0}, 10
v_add_u32 v{vAo[u]}, s{sT1}, v{vRl}
""")
        if u:
            P += I(f"""
s_mul_i32 s{sT1}, s{sT0}, 15360
s_add_u32 s{sT1}, s{sT1}, {(u-1)*5120}
v_add_u32 v{vRW[u]}, s{sT1}, v{vRl}
""")
    vRR = V.get()
    P += I(f"s_mul_i32 s{sT1}, s{sWv}, 15360\nv_add_u32 v{vRR}, s{sT1}, v{vRl}")

    def fpoll(k):
        return f"buffer_load_dword v{vPo+k}, v{vFl[k]}, {q4(sWS)}, 0 offen sc1", f"v_cmp_ne_u32 vcc, s{sTAG}, v{vPo+k}"
    P += [Wait(f1)]
    ld, ck = fpoll(0)
    P += I(ld) + I(ck) + poll_tail("f1a", ld, ck)
    P += stamp("f1a")

    def aload(i):
        b = vAb + 16 * (i % 4)
        h = I(f"s_add_u32 s{sAo}, s{sHA}, {i*4*4096}")
        if i == 13:
            h += I(f"s_cmp_ge_u32 s{sWv}, 2\ns_cselect_b32 s{sAo}, {OOB}, s{sAo}")
        return [(h if u == 0 else []) + I(f"buffer_load_dwordx4 v[{b+4*u}:{b+4*u+3}], v{vAo[u]}, {q4(sWS)}, s{sAo} offen sc1") for u in range(4)]
    for i in range(3):
        P += aload(i)
    fill = [[] for _ in range(24)]
    head = [[] for _ in range(24)]
    pre_ = [[] for _ in range(24)]
    for i in range(24):
        g = []
        if i + 3 < 24:
            g += aload(i + 3)
        if i >= 1 and i + 11 < 24:
            g += WL[i + 11]
        fill[i] += g
    ld, ck = fpoll(1)
    fill[9] += [I(ld)]
    pre_[11] += I(ck) + poll_tail("f1b", ld, ck)

    def accf(base, u, nt):
        return base + 20 * u + 4 * nt
    wr = [I(f"ds_write_b128 v{vRW[u]}, v[{accf(vAF,u,nt)}:{accf(vAF,u,nt)+3}] offset:{1024*nt}") for u in range(1, 4) for nt in range(5)]
    fill[14] += wr[:8]
    fill[15] += wr[8:]
    pre_[16] += [Wait(lgkm0=True)] + I("s_barrier")
    fill[16] += [I(f"ds_read_b128 v[{accf(vAF,u,nt)}:{accf(vAF,u,nt)+3}], v{vRR} offset:{(u-1)*5120 + 1024*nt}") for u in range(1, 4) for nt in range(5)]
    vXr = [vPo, vPo + 2, V.get(2, 2), V.get(2, 2)]
    ex = []
    G = lambda nt, i: accf(vAF, 0, nt) + i
    for nt in range(5):
        for i in range(4):
            ex.append(I(f"v_add_f32 v{G(nt,i)}, v{G(nt,i)}, v{accf(vAF,1,nt)+i}"))
            ex.append(I(f"v_add_f32 v{accf(vAF,2,nt)+i}, v{accf(vAF,2,nt)+i}, v{accf(vAF,3,nt)+i}"))
    for nt in range(5):
        for i in range(4):
            ex.append(I(f"v_add_f32 v{G(nt,i)}, v{G(nt,i)}, v{accf(vAF,2,nt)+i}"))
    fill[17] += ex[:30]
    fill[18] += ex[30:]
    fr = vAF + 20
    vXs, vSt2, vB2, vDk = fr, fr + 4, fr + 12, fr + 20
    vXf = fr + 28
    tq = fr + 48
    head[13] += I(f"""
s_lshl_b32 s{sT0}, s{sRB2}, 6
s_lshl_b32 s{sT1}, s{sWv}, 4
s_add_u32 s{sT0}, s{sT0}, s{sT1}
v_lshl_add_u32 v{a0}, v{vQ}, 2, s{sT0}
s_mul_i32 s{sT2}, s{sCT2}, 160
v_mul_u32_u24 v{a1}, 1280, v{a0}
v_lshl_add_u32 v{t0}, v{vC}, 3, v{a1}
v_lshl_add_u32 v{t1}, v{vC}, 1, v{a1}
v_lshrrev_b32 v{a1}, 3, v{a0}
v_and_b32 v{a2}, 7, v{a0}
v_lshlrev_b32 v{a1}, 7, v{a1}
v_lshl_add_u32 v{a1}, v{a2}, 3, v{a1}
v_add_u32 v{a1}, {WS_STATS}, v{a1}
v_lshlrev_b32 v{t2}, 3, v{vC}
v_lshlrev_b32 v{t3}, 1, v{vC}
""")
    fill[14] += [I(f"buffer_load_dwordx2 v[{vXr[i]}:{vXr[i]+1}], v{t0}, {q4(sX)}, s{sT2} offen offset:{1280*i}") for i in range(4)]
    l2 = [I(f"buffer_load_ushort v{vXs+i}, v{t1}, {q4(sX)}, s{sT2} offen offset:{1280*i+128}") for i in range(4)]
    l2 += [I(f"buffer_load_dwordx4 v[{vSt2+4*k}:{vSt2+4*k+3}], v{a1}, {q4(sWS)}, 0 offen offset:{16*k} sc1") for k in range(2)]
    l2 += [srd(sT, 30, 1280) + I(f"buffer_load_dwordx2 v[{vB2}:{vB2+1}], v{t2}, {q4(sT)}, s{sT2} offen"),
           I(f"buffer_load_ushort v{vB2+2}, v{t3}, {q4(sT)}, s{sT2} offen offset:128"),
           srd(sR, 20, 1280) + I(f"buffer_load_dwordx2 v[{vDk}:{vDk+1}], v{t2}, {q4(sR)}, s{sT2} offen"),
           I(f"buffer_load_ushort v{vDk+2}, v{t3}, {q4(sR)}, s{sT2} offen offset:128")]
    fill[19] += l2
    ex = []

    def unpack5(dst, raw2, raw1):
        return [I(f"v_lshlrev_b32 v{dst[0]}, 16, v{raw2}"), I(f"v_and_b32 v{dst[1]}, 0xffff0000, v{raw2}"),
                I(f"v_lshlrev_b32 v{dst[2]}, 16, v{raw2+1}"), I(f"v_and_b32 v{dst[3]}, 0xffff0000, v{raw2+1}"),
                I(f"v_lshlrev_b32 v{dst[4]}, 16, v{raw1}")]
    ex += unpack5([vB2 + 3 + k for k in range(5)], vB2, vB2 + 2)
    ex += unpack5([vDk + 3 + k for k in range(5)], vDk, vDk + 2)
    XF = lambda nt, i: vXf + 4 * nt + i
    for i in range(4):
        ex += unpack5([XF(nt, i) for nt in range(5)], vXr[i], vXs + i)
    for nt in range(5):
        for i in range(4):
            ex.append(I(f"v_add_f32 v{G(nt,i)}, v{G(nt,i)}, v{vB2+3+nt}"))
        for i in range(4):
            ex.append(I(f"v_mul_f32 v{tq+i}, {f32(-math.log2(math.e))}, v{G(nt,i)}"))
        for i in range(4):
            ex.append(I(f"v_exp_f32 v{tq+i}, v{tq+i}"))
        for i in range(4):
            ex.append(I(f"v_fma_f32 v{tq+4+i}, v{XF(nt,i)}, v{vSt2+2*i}, -v{vSt2+2*i+1}"))
        for i in range(4):
            ex.append(I(f"v_add_f32 v{tq+i}, 1.0, v{tq+i}"))
        for i in range(4):
            ex.append(I(f"v_rcp_f32 v{tq+i}, v{tq+i}"))
        for i in range(4):
            ex.append(I(f"v_mul_f32 v{tq+4+i}, v{tq+4+i}, v{vDk+3+nt}"))
        for i in range(4):
            ex.append(I(f"v_mul_f32 v{G(nt,i)}, v{G(nt,i)}, v{tq+i}"))
        for i in range(4):
            ex.append(I(f"v_fmac_f32 v{XF(nt,i)}, v{tq+4+i}, v{G(nt,i)}"))
    k3 = len(ex) // 3
    fill[21] += ex[:k3]
    fill[22] += ex[k3:2 * k3]
    fill[23] += ex[2 * k3:]

    for i in range(24):
        base = vAF if i < 14 else vAY
        first = i in (0, 14)
        mf = []
        for u in range(4):
            for nt in range(5):
                d = vr(accf(base, u, nt), 4)
                b = 20 * (i % 12) + 4 * nt
                mf.append(I(f"v_mfma_f32_16x16x32_bf16 {d}, v[{vAb+16*(i%4)+4*u}:{vAb+16*(i%4)+4*u+3}], a[{b}:{b+3}], {'0' if first else d}"))
        body = spread(mf, fill[i], 0, 20)
        P += [pre_[i], stamp(f"q{i}") if i in (4, 8, 11, 14, 16, 20) else [], body[0], head[i], body[1:]]
    P += stamp("p2end")
    for u in range(1, 4):
        P += I(f"v_add_u32 v{vRW[u]}, 61440, v{vRW[u]}")
    P += I(f"v_add_u32 v{vRR}, 61440, v{vRR}")
    for u in range(1, 4):
        for nt in range(5):
            P += I(f"ds_write_b128 v{vRW[u]}, v[{accf(vAY,u,nt)}:{accf(vAY,u,nt)+3}] offset:{1024*nt}")
    P += I(f"""
v_mul_u32_u24 v{a1}, 2560, v{a0}
v_lshl_add_u32 v{t0}, v{vC}, 4, v{a1}
v_lshl_add_u32 v{t1}, v{vC}, 2, v{a1}
v_add_u32 v{t2}, 5120, v{t0}
v_add_u32 v{t3}, 5120, v{t1}
s_mul_i32 s{sT2}, s{sCT2}, 320
""")
    P += [Wait(lgkm0=True)] + I("s_barrier")
    for nt in range(5):
        for u in range(1, 4):
            P += I(f"ds_read_b128 v[{accf(vAY,u,nt)}:{accf(vAY,u,nt)+3}], v{vRR} offset:{(u-1)*5120 + 1024*nt}")
    p2 = lambda r: f"v[{r}:{r+1}]"
    vO = vAb
    for nt in range(5):
        for h in range(2):
            y = lambda u: p2(accf(vAY, u, nt) + 2 * h)
            P += I(f"v_pk_add_f32 {y(0)}, {y(0)}, {y(1)}\nv_pk_add_f32 {y(2)}, {y(2)}, {y(3)}\nv_pk_add_f32 {y(0)}, {y(0)}, {y(2)}")
        for i in range(4):
            d = vO + 4 * i + nt if nt < 4 else vO + 16 + i
            P += I(f"v_fma_f32 v{d}, v{accf(vAY,0,nt)+i}, v{G(nt,i)}, v{XF(nt,i)}")
        if nt == 3:
            for i in range(4):
                P += I(f"buffer_store_dwordx4 v[{vO+4*i}:{vO+4*i+3}], v{t0 if i < 2 else t2}, {q4(sO)}, s{sT2} offen offset:{2560*(i&1)} {cfg.out_aux}")
    for i in range(4):
        P += I(f"buffer_store_dword v{vO+16+i}, v{t1 if i < 2 else t3}, {q4(sO)}, s{sT2} offen offset:{2560*(i&1)+256} {cfg.out_aux}")
    if cfg.diag:
        P += stamp("st_issued") + [Wait(vm0=True)] + stamp("end") + stamp("x")
        P += I(f"""
s_getreg_b32 s{sT0}, hwreg(HW_REG_XCC_ID)
v_writelane_b32 v{vDbg}, s{sT0}, 62
v_writelane_b32 v{vDbg}, s{sL}, 63
s_lshl_b32 s{sT0}, s2, 10
s_add_u32 s{sT0}, s{sT0}, {WS_DBG}
v_lshlrev_b32 v{a1}, 2, v0
buffer_store_dword v{vDbg}, v{a1}, {q4(sWS)}, s{sT0} offen
""")
        P += [Raw(f"; STAMPS {T} " + ",".join(names[:-1]))]
    if cfg.pad:
        P += stamp("st_issued") + [Wait(vm0=True)] + stamp("end") + [Wait(lgkm0=True)]
        P += [Raw(f"""    s_add_u32 s84, s84, 5000
    s_mov_b32 s88, 0
L_{T}_pad:
    s_memrealtime s[86:87]
    s_add_u32 s88, s88, 1
    s_waitcnt lgkmcnt(0)
    s_sub_u32 s86, s86, s84
    s_cmp_ge_u32 s88, 100000
    s_cbranch_scc1 L_{T}_padx
    s_cmp_lt_i32 s86, 0
    s_cbranch_scc1 L_{T}_pad
L_{T}_padx:""")]
    P += I("s_endpgm")
    return P


def generate(cfg):
    hdr = open("cdna_kernels/" + NAME + ".s.ref").read().split("; Override launch")[0]
    entry = I(f"""
s_load_dwordx16 s[4:19], s[0:1], 0
s_load_dwordx2 s[20:21], s[0:1], 64
s_load_dwordx8 s[24:31], s[0:1], 80
s_load_dwordx2 s[32:33], s[0:1], 112
s_load_dwordx2 s[34:35], s[0:1], 128
""")
    ids = f"""    s_cmp_ge_u32 s2, 256
    s_cbranch_scc1 L_exit
    s_bfe_u32 s3, s2, 0x30003
    s_lshl_b32 s22, s2, 1
    s_and_b32 s22, s22, 8
    s_add_u32 s3, s3, s22
    s_lshr_b32 s22, s2, 6
    s_lshl_b32 s22, s22, 2
    s_and_b32 s23, s2, 3
    s_add_u32 s22, s22, s23
    s_lshl_b32 s23, s22, 4
    s_add_u32 s23, s23, s3
    s_cmp_ge_u32 s22, 9
    s_cbranch_scc1 L_S_start
"""
    st = {}
    body = ids
    for ssm in (False, True):
        T = "S" if ssm else "F"
        body += f"L_{T}_start:\n" + finalize(entry + build_path(ssm, cfg), st) + f"L_{T}_end:\n"
        if not ssm:
            body += "L_exit:\n    s_endpgm\n    .p2align 6\n"
    txt = f"""{hdr}; @launch grid=(256,1,1) block=(256,1,1) lds={LDS_BYTES}
.amdgcn_target "amdgcn-amd-amdhsa--gfx950"
.text
.globl {NAME}_kernel
.p2align 8
.type {NAME}_kernel,@function
{NAME}_kernel:
{body}
.section .rodata,"a"
.p2align 6
.amdhsa_kernel {NAME}_kernel
  .amdhsa_next_free_vgpr 512
  .amdhsa_next_free_sgpr 102
  .amdhsa_accum_offset 256
  .amdhsa_group_segment_fixed_size 0
  .amdhsa_kernarg_size 136
  .amdhsa_user_sgpr_count 2
  .amdhsa_user_sgpr_kernarg_segment_ptr 1
  .amdhsa_system_sgpr_workgroup_id_x 1
  .amdhsa_float_denorm_mode_32 3
.end_amdhsa_kernel
"""
    return txt, st


if __name__ == "__main__":
    cfg = Cfg()
    out = None
    for a in sys.argv[1:]:
        if "=" in a:
            k, v = a.split("=", 1)
            cur = getattr(cfg, k)
            setattr(cfg, k, type(cur)(int(v)) if isinstance(cur, (bool, int)) else v)
        else:
            out = a
    txt, st = generate(cfg)
    open(out or "cdna_kernels/" + NAME + ".s", "w").write(txt)
    print("generated", st, "lines", txt.count("\n"))
```

```python
import sys, struct, math
from kgen import *

NAME = "recurrent_scan__ssm_conv_s5__dense_activation_gelu__prompt"

WS_EPOCH = 0
WS_F0 = 0x1000
WS_F1 = 0x10000
WS_STATS = 0x30000
WS_EG = 0x60000
WS_WP = 0x100000
WS_HID = 0x500000
WS_DBG = 0x1200000
WS_SIZE = 0x1300000
OOB = 0x70000000

L_X = 0
L_W = 49152
L_CST = 122880
L_TAB = 143360
L_ST = 155648
L_SEG = 156672
LDS_BYTES = 163840


def f32(x):
    return "0x%08x" % struct.unpack("<I", struct.pack("<f", x))[0]


class Cfg:
    diag = 0
    padmask = 0
    padval = 0
    pad = ""
    rel_ld = 0
    rel_proc = 3
    f0_flag = 7
    f0_poll = 13
    out_aux = ""
    spin = 200000


def build_path(ssm, cfg):
    T = "S" if ssm else "F"
    V = Alloc("v", 1, 56)
    S = Alloc("s", 60, 84)
    P = []
    nstamp = [0]

    names = []

    def stamp(name="", level=1):
        if cfg.pad:
            return I("s_memrealtime s[84:85]") if name in cfg.pad.split("|") else []
        if cfg.diag < level:
            return []
        k = nstamp[0]
        nstamp[0] += 1
        names.append(name)
        assert k < 30
        o = []
        if k == 0:
            o += I(f"v_mov_b32 v{vDbg}, 0")
        if k >= 1:
            b = 84 + 4 * ((k - 1) % 2)
            o += I(f"v_writelane_b32 v{vDbg}, s{b}, {2*k-2}\nv_writelane_b32 v{vDbg}, s{b+2}, {2*k-1}")
        b = 84 + 4 * (k % 2)
        return o + I(f"s_memrealtime s[{b}:{b+1}]\ns_memtime s[{b+2}:{b+3}]")

    sX, sW, sWS, sR, sT, sO = 36, 40, 44, 48, 52, 56

    def srd(d, ptr, size):
        return I(f"""s_mov_b32 s{d}, s{ptr}
s_mov_b32 s{d+1}, s{ptr+1}
s_mov_b32 s{d+2}, {size}
s_mov_b32 s{d+3}, 0x20000""")

    def q4(b):
        return f"s[{b}:{b+3}]"

    sRB1, sCT, sL = 3, 22, 23
    sWv, sKK, sSX, sSW, sM0X, sM0W, sTAG, sT0, sT1, sT2 = [S.get() for _ in range(10)]
    vL, vC, vQ = V.get(), V.get(), V.get()
    t0, t1, t2, t3 = [V.get() for _ in range(4)]
    vPo = V.get(4, 2)
    a0, a1, a2 = V.get(), V.get(), V.get()
    vRl, vRl2, vTag = V.get(), V.get(), V.get()
    vDbg = V.get()
    assert vDbg == 18

    P += stamp("start")
    P += I(f"""
v_lshrrev_b32 v{t0}, 6, v0
v_and_b32 v{vL}, 63, v0
v_readfirstlane_b32 s{sWv}, v{t0}
v_and_b32 v{vC}, 15, v0
v_lshrrev_b32 v{vQ}, 4, v{vL}
""")
    P += I(f"""
s_and_b32 s{sT0}, s{sCT}, 3
s_lshl_b32 s{sT0}, s{sT0}, 2
s_lshr_b32 s{sT1}, s{sCT}, 2
s_add_u32 s{sT0}, s{sT0}, s{sT1}
s_add_u32 s{sT0}, s{sT0}, s{sRB1}
s_mul_i32 s{sT1}, s{sT0}, 205
s_lshr_b32 s{sT1}, s{sT1}, 11
s_mul_i32 s{sT1}, s{sT1}, 10
s_sub_u32 s{sKK}, s{sT0}, s{sT1}
s_lshl_b32 s{sM0X}, s{sWv}, 12
s_mul_i32 s{sM0W}, s{sWv}, 6144
s_add_u32 s{sM0W}, s{sM0W}, {L_W}
""")
    vSt = 160
    vStA = 170
    P += I(f"""
s_lshl_b32 s{sT0}, s{sRB1}, 7
s_lshl_b32 s{sT1}, s{sCT}, 3
s_add_u32 s{sT0}, s{sT0}, s{sT1}
s_lshl_b32 s{sT1}, s{sWv}, 1
s_add_u32 s{sT0}, s{sT0}, s{sT1}
v_lshrrev_b32 v{t0}, 5, v{vL}
v_add_u32 v{vStA}, s{sT0}, v{t0}
v_and_b32 v{t1}, 31, v{vL}
v_mul_u32_u24 v{t0}, 1280, v{vStA}
v_lshl_add_u32 v{t2}, v{t1}, 4, v{t0}
v_lshl_add_u32 v{t3}, v{t1}, 3, v{t0}
""")
    vXo = [vRl2] + [V.get() for _ in range(3)]
    vWo = [V.get() for _ in range(6)]
    pre = []
    pre += I(f"""
v_lshrrev_b32 v{a0}, 3, v{vL}
v_and_b32 v{a1}, 7, v{vL}
s_lshl_b32 s{sT0}, s{sRB1}, 7
""")
    for j in range(4):
        r = vXo[j]
        if not ssm:
            pre += I(f"""
s_lshl_b32 s{sT1}, s{sWv}, 5
s_add_u32 s{sT1}, s{sT1}, s{sT0}
s_add_u32 s{sT1}, s{sT1}, {8*j}
v_add_u32 v{r}, s{sT1}, v{a0}
""")
        else:
            pre += I(f"""
s_lshr_b32 s{sT1}, s{sWv}, 1
s_lshl_b32 s{sT1}, s{sT1}, 6
s_and_b32 s{sT2}, s{sWv}, 1
s_lshl_b32 s{sT2}, s{sT2}, 3
s_add_u32 s{sT1}, s{sT1}, s{sT2}
s_add_u32 s{sT1}, s{sT1}, s{sT0}
s_add_u32 s{sT1}, s{sT1}, {32*(j&1) + 4*(j>>1)}
v_lshrrev_b32 v{a2}, 5, v{vL}
v_and_b32 v{r}, 3, v{a0}
v_lshl_add_u32 v{r}, v{a2}, 4, v{r}
v_add_u32 v{r}, s{sT1}, v{r}
""")
        pre += I(f"""
v_mul_u32_u24 v{r}, 1280, v{r}
v_lshrrev_b32 v{a2}, 1, v{a0}
v_xor_b32 v{a2}, {4*(j&1)}, v{a2}
v_xor_b32 v{a2}, v{a1}, v{a2}
v_lshl_add_u32 v{r}, v{a2}, 4, v{r}
""")
        if j:
            pre += I(f"v_subrev_u32 v{r}, {1024*j}, v{r}")
    sCH0 = S.get()
    if ssm:
        pre += I(f"""
s_sub_u32 s{sT1}, s{sCT}, 9
s_mul_i32 s{sCH0}, s{sT1}, 96
s_min_u32 s{sCH0}, s{sCH0}, 544
s_lshr_b32 s{sT1}, s{sWv}, 1
s_mul_i32 s{sT1}, s{sT1}, 48
s_add_u32 s{sT1}, s{sT1}, s{sCH0}
""")
        for j in range(6):
            r = vWo[j]
            pre += I(f"""
v_add_u32 v{r}, s{sT1}, v{a0}
v_mul_u32_u24 v{r}, 1280, v{r}
v_lshrrev_b32 v{a2}, 1, v{a0}
v_xor_b32 v{a2}, {4*(j&1)}, v{a2}
v_xor_b32 v{a2}, v{a1}, v{a2}
v_lshl_add_u32 v{r}, v{a2}, 4, v{r}
""")
            if j:
                pre += I(f"v_add_u32 v{r}, {8*j*1280 - 1024*(j%3)}, v{r}")
    else:
        pre += I(f"""
s_mul_i32 s{sT1}, s{sCT}, 384
s_mul_i32 s{sT2}, s{sWv}, {16*3456}
s_add_u32 s{sT1}, s{sT1}, s{sT2}
""")
        for j in range(6):
            r = vWo[j]
            pre += I(f"""
v_add_u32 v{a0}, {64*j}, v{vL}
v_mul_u32_u24 v{a1}, 2731, v{a0}
v_lshrrev_b32 v{a1}, 16, v{a1}
v_mul_u32_u24 v{a2}, 24, v{a1}
v_sub_u32 v{a0}, v{a0}, v{a2}
v_and_b32 v{a2}, 2, v{a1}
v_xor_b32 v{a0}, v{a0}, v{a2}
v_lshrrev_b32 v{a2}, 1, v{a1}
v_and_b32 v{a2}, 4, v{a2}
v_xor_b32 v{a0}, v{a0}, v{a2}
v_mul_u32_u24 v{r}, 3456, v{a1}
v_lshl_add_u32 v{r}, v{a0}, 4, v{r}
v_add_u32 v{r}, s{sT1}, v{r}
""")
            if j % 3:
                pre += I(f"v_subrev_u32 v{r}, {1024*(j%3)}, v{r}")
    P += pre
    P += srd(sX, 4, 2048 * 1280)
    P += stamp("pre1", 9)
    P += I(f"""
buffer_load_dwordx4 v[{vSt}:{vSt+3}], v{t2}, {q4(sX)}, 0 offen
buffer_load_dwordx4 v[{vSt+4}:{vSt+7}], v{t2}, {q4(sX)}, 0 offen offset:512
buffer_load_dwordx2 v[{vSt+8}:{vSt+9}], v{t3}, {q4(sX)}, 0 offen offset:1024
s_load_dword s{sTAG}, s[34:35], {WS_EPOCH}
""")
    if cfg.pad in ("post1",):
        P += [Wait(vm0=True)] + stamp("post1", 9)
    if ssm:
        P += I(f"""
s_bitcmp1_b32 s{sWv}, 0
s_cselect_b32 s{sW}, s12, s10
s_cselect_b32 s{sW+1}, s13, s11
s_mov_b32 s{sW+2}, {640*1280}
s_mov_b32 s{sW+3}, 0x20000
s_cselect_b32 s{sR}, s16, s14
s_cselect_b32 s{sR+1}, s17, s15
s_mov_b32 s{sR+2}, {640*1280}
s_mov_b32 s{sR+3}, 0x20000
""")
        vPar = 200
        P += I(f"""
s_and_b32 s{sT1}, s{sWv}, 1
s_mul_i32 s{sT1}, s{sT1}, 48
s_add_u32 s{sT1}, s{sT1}, s{sCH0}
v_add_u32 v{a0}, s{sT1}, v{vC}
v_lshlrev_b32 v{a0}, 1, v{a0}
""")
        for k, ptr in enumerate((6, 8, 18)):
            P += srd(sT, ptr, 1280)
            for n in range(3):
                P += I(f"buffer_load_ushort v{vPar+3*k+n}, v{a0}, {q4(sT)}, 0 offen offset:{32*n}")
    else:
        P += srd(sW, 24, 640 * 3456)
        P += srd(sR, 28, 1728 * 1280)
    P += srd(sWS, 34, WS_SIZE)
    P += srd(sO, 32, 2048 * 2560)

    WSTEP = 128 if ssm else 64 * 3456

    def dma(i):
        slot = i % 3
        g = []
        head = I(f"""s_lshl_b32 s{sSX}, s{sKK}, 7
s_add_u32 m0, s{sM0X}, {slot*16384}""")
        if not ssm:
            head = I(f"s_mul_i32 s{sSW}, s{sKK}, {WSTEP}") + head
        sw = sSX if ssm else sSW
        for j in range(4):
            x = I(f"buffer_load_dwordx4 v{vXo[j]}, {q4(sX)}, s{sSX} offen offset:{1024*j} lds")
            g.append((head if j == 0 else []) + x)
        for j in range(6):
            h = []
            if j % 3 == 0:
                h = I(f"s_add_u32 m0, s{sM0W}, {slot*24576 + 1024*j}")
                if j == 0:
                    h += I(f"s_add_u32 s{sKK}, s{sKK}, 1")
                else:
                    h += I(f"s_cmp_eq_u32 s{sKK}, 10\ns_cselect_b32 s{sKK}, 0, s{sKK}")
            g.append(h + I(f"buffer_load_dwordx4 v{vWo[j]}, {q4(sW)}, s{sw} offen offset:{1024*(j%3)} lds"))
        return g

    D = [dma(i) for i in range(10)]
    P += D[0]
    P += I(f"""
v_lshlrev_b32 v{a0}, 21, v{vL}
v_add_u32 v{a0}, 0xff00, v{a0}
buffer_load_dword a255, v{a0}, {q4(sWS)}, 0 offen
buffer_load_dword a255, v{a0}, {q4(sO)}, 0 offen
s_getpc_b64 s[{sT}:{sT+1}]
L_{T}_pc:
s_mov_b32 s{sT+2}, L_{T}_end-L_{T}_pc
s_mov_b32 s{sT+3}, 0x20000
v_lshlrev_b32 v{a0}, 7, v0
buffer_load_dword a255, v{a0}, {q4(sT)}, 0 offen
""")
    vU = 172
    st = []
    for k in range(10):
        st += I(f"v_lshlrev_b32 v{vU+2*k}, 16, v{vSt+k}\nv_and_b32 v{vU+2*k+1}, 0xffff0000, v{vSt+k}")
    acc = vSt
    st += I(f"v_pk_add_f32 v[{acc}:{acc+1}], v[{vU}:{vU+1}], v[{vU+2}:{vU+3}]")
    for k in range(2, 10):
        st += I(f"v_pk_add_f32 v[{acc}:{acc+1}], v[{acc}:{acc+1}], v[{vU+2*k}:{vU+2*k+1}]")

    def red32(r, tmp):
        o = []
        for sh in (8, 4, 2, 1):
            o += I(f"v_add_f32_dpp v{r}, v{r}, v{r} row_ror:{sh} row_mask:0xf bank_mask:0xf")
        o += I(f"v_mov_b32 v{tmp}, v{r}\nv_permlane16_swap_b32 v{r}, v{tmp}\nv_add_f32 v{r}, v{r}, v{tmp}")
        return o
    m = vSt + 2
    st += I(f"v_add_f32 v{m}, v{acc}, v{acc+1}")
    st += red32(m, m + 1)
    st += I(f"v_mul_f32 v{m}, {f32(1/640)}, v{m}")
    for k in range(10):
        st += I(f"v_pk_add_f32 v[{vU+2*k}:{vU+2*k+1}], v[{vU+2*k}:{vU+2*k+1}], v[{m}:{m+1}] op_sel_hi:[1,0] neg_lo:[0,1] neg_hi:[0,1]")
    st += I(f"v_pk_mul_f32 v[{acc}:{acc+1}], v[{vU}:{vU+1}], v[{vU}:{vU+1}]")
    for k in range(1, 10):
        st += I(f"v_pk_fma_f32 v[{acc}:{acc+1}], v[{vU+2*k}:{vU+2*k+1}], v[{vU+2*k}:{vU+2*k+1}], v[{acc}:{acc+1}]")
    va = vSt + 4
    st += I(f"v_add_f32 v{va}, v{acc}, v{acc+1}")
    st += red32(va, va + 1)

    def rbf(r):
        return I(f"v_cvt_pk_bf16_f32 v{r}, v{r}, v{r}\nv_lshlrev_b32 v{r}, 16, v{r}")
    st += I(f"v_mul_f32 v{va}, {f32(1/640)}, v{va}")
    st += rbf(va) + rbf(m)
    st += I(f"v_add_f32 v{va}, {f32(1e-5)}, v{va}")
    st += rbf(va)
    st += I(f"v_sqrt_f32 v{va}, v{va}")
    st += rbf(va)
    st += I(f"""v_rcp_f32 v{va}, v{va}
v_lshrrev_b32 v{t0}, 3, v{vStA}
v_and_b32 v{t2}, 7, v{vStA}
v_mul_f32 v{va+1}, v{m}, v{va}
v_lshlrev_b32 v{t0}, 7, v{t0}
v_lshl_add_u32 v{t0}, v{t2}, 3, v{t0}
v_add_u32 v{t0}, {WS_STATS}, v{t0}
v_cmp_eq_u32 vcc, 0, v{t1}
v_mov_b32 v{t2}, {OOB}
v_cndmask_b32 v{t0}, v{t2}, v{t0}, vcc""")
    st_store = I(f"buffer_store_dwordx2 v[{va}:{va+1}], v{t0}, {q4(sWS)}, 0 offen sc1")
    st += st_store
    st += I(f"s_mul_i32 s{sTAG}, s{sTAG}, 1664525\ns_add_u32 s{sTAG}, s{sTAG}, 1013904223")

    vbX = [V.get(), V.get()]
    st += I(f"""
s_lshr_b32 s{sT0}, s{sWv}, 1
s_lshl_b32 s{sT0}, s{sT0}, 13
v_lshrrev_b32 v{a0}, 1, v{vC}
v_xor_b32 v{a0}, v{vQ}, v{a0}
v_lshlrev_b32 v{a1}, 7, v{vC}
v_lshl_add_u32 v{a1}, v{a0}, 4, v{a1}
v_add_u32 v{vbX[0]}, s{sT0}, v{a1}
v_xor_b32 v{vbX[1]}, 64, v{vbX[0]}
""")
    if ssm:
        vbW = [V.get(), V.get()]
        st += I(f"""
s_and_b32 s{sT0}, s{sWv}, 1
s_mul_i32 s{sT0}, s{sT0}, 12288
s_add_u32 s{sT0}, s{sT0}, {L_W}
v_add_u32 v{vbW[0]}, s{sT0}, v{a1}
v_xor_b32 v{vbW[1]}, 64, v{vbW[0]}
""")
    else:
        vbW = [V.get() for _ in range(6)]
        st += I(f"""
v_bfe_u32 v{a0}, v{vL}, 2, 2
v_lshl_add_u32 v{a1}, v{vQ}, 3, v{a0}
v_mul_u32_u24 v{a1}, 384, v{a1}
v_and_b32 v{a2}, 1, v{vL}
v_lshl_add_u32 v{a1}, v{a2}, 3, v{a1}
v_add_u32 v{a1}, {L_W}, v{a1}
v_and_b32 v{a0}, 2, v{a0}
v_and_b32 v{a2}, 1, v{vQ}
v_lshl_or_b32 v{a0}, v{a2}, 2, v{a0}
v_bfe_u32 v{a2}, v{vL}, 1, 1
s_and_b32 s{sT0}, s{sWv}, 1
s_mul_i32 s{sT0}, s{sT0}, 12
v_add_u32 v{a2}, s{sT0}, v{a2}
""")
        for ft in range(6):
            st += I(f"""
v_add_u32 v{vbW[ft]}, {2*ft}, v{a2}
v_xor_b32 v{vbW[ft]}, v{vbW[ft]}, v{a0}
v_lshl_add_u32 v{vbW[ft]}, v{vbW[ft]}, 4, v{a1}
""")
    if ssm:
        A, B = vU, vU + 3
        n1, n2, wa, wb = vU + 6, vU + 7, vU + 8, vU + 9
        o = vU + 10
        u0, u1, u2 = vU + 12, vU + 13, vU + 14
        cf = vU + 16
        tb = []
        tb += I(f"""
s_lshr_b32 s{sT0}, s{sWv}, 1
s_lshl_b32 s{sT0}, s{sT0}, 2
v_add_u32 v{u0}, s{sT0}, v{vQ}
v_lshlrev_b32 v{n1}, 8, v{u0}
v_cvt_f32_u32 v{n1}, v{n1}
v_subrev_u32 v{u1}, 1, v{u0}
v_lshlrev_b32 v{u1}, 4, v{u1}
v_add_u32 v{u2}, 1, v{u0}
v_cmp_gt_u32 vcc, 2, v{u0}
v_cndmask_b32 v{n2}, v{u1}, v{u2}, vcc
v_cvt_f32_u32 v{n2}, v{n2}
s_and_b32 s{sT1}, s{sWv}, 1
s_mul_i32 s{sT1}, s{sT1}, 384
s_add_u32 s{sT1}, s{sT1}, {L_TAB}
v_mul_u32_u24 v{wa}, 768, v{u0}
v_lshl_add_u32 v{u1}, v{vC}, 3, s{sT1}
v_add_u32 v{wa}, v{wa}, v{u1}
v_add_u32 v{wb}, {14*768}, v{u1}
v_mov_b32 v{u2}, {L_SEG}
v_cmp_eq_u32 vcc, 0, v{u0}
v_cndmask_b32 v{wb}, v{u2}, v{wb}, vcc
v_add_u32 v{t3}, {8*768}, v{wa}
v_cmp_eq_u32 vcc, 6, v{u0}
v_cndmask_b32 v{t3}, v{t3}, v{u2}, vcc
v_cmp_gt_u32 vcc, 6, v{u0}
""")
        for n in range(3):
            lre, lim, ldt = vPar + n, vPar + 3 + n, vPar + 6 + n
            tb += I(f"""
v_lshlrev_b32 v{lre}, 16, v{lre}
v_lshlrev_b32 v{lim}, 16, v{lim}
v_lshlrev_b32 v{ldt}, 16, v{ldt}
v_mul_f32 v{ldt}, {f32(math.log2(math.e))}, v{ldt}
v_exp_f32 v{ldt}, v{ldt}
""") + rbf(ldt) + I(f"""
v_mul_f32 v{A+n}, v{ldt}, v{lre}
v_mul_f32 v{B+n}, v{ldt}, v{lim}
v_mul_f32 v{A+n}, {f32(math.log2(math.e))}, v{A+n}
v_mul_f32 v{B+n}, {f32(1/(2*math.pi))}, v{B+n}
""")
            for which, N in enumerate((n1, n2)):
                tb += I(f"""
v_mul_f32 v{u0}, v{N}, v{A+n}
v_mul_f32 v{u1}, v{N}, v{B+n}
v_exp_f32 v{u0}, v{u0}
v_fract_f32 v{u1}, v{u1}
v_cos_f32 v{o}, v{u1}
v_sin_f32 v{o+1}, v{u1}
""")
                if which == 1:
                    tb += I(f"v_cndmask_b32 v{u0}, 0, v{u0}, vcc")
                tb += I(f"""
v_mul_f32 v{o}, v{o}, v{u0}
v_mul_f32 v{o+1}, v{o+1}, v{u0}
""")
                if which == 0:
                    tb += I(f"ds_write_b64 v{wa}, v[{o}:{o+1}] offset:{128*n}")
                else:
                    tb += I(f"ds_write_b64 v{t3}, v[{o}:{o+1}] offset:{128*n}")
            tb += I(f"""
v_add_f32 v{o}, -1.0, v{o}
v_mul_f32 v{u0}, v{lre}, v{lre}
v_fmac_f32 v{u0}, v{lim}, v{lim}
v_rcp_f32 v{u0}, v{u0}
v_mul_f32 v{cf}, v{o}, v{lre}
v_mul_f32 v{cf+1}, v{o+1}, v{lre}
v_fmac_f32 v{cf}, v{o+1}, v{lim}
v_fma_f32 v{cf+1}, -v{o}, v{lim}, v{cf+1}
v_add_f32 v{u0}, v{u0}, v{u0}
v_mul_f32 v{cf}, v{cf}, v{u0}
v_mul_f32 v{cf+1}, v{cf+1}, v{u0}
ds_write_b64 v{wb}, v[{cf}:{cf+1}] offset:{128*n}
""")
        st += tb
    P += stamp("d0iss")
    P += spread(st, D[1], 8, len(st) - 4)
    P += stamp("stats")

    vF = [80, 120]
    vA = 160
    vCS = 56
    aOne = 240
    P += I(f"v_mov_b32 v{a0}, 0x3f803f80")
    P += I("\n".join(f"v_accvgpr_write_b32 a{aOne+k}, v{a0}" for k in range(4)))

    def acc_(m, y):
        return vA + 4 * (6 * m + y)

    def reads(s):
        slot, h, b = (s // 2) % 3, s % 2, vF[s % 2]
        xs = [I(f"ds_read_b128 v[{b+4*m}:{b+4*m+3}], v{vbX[h]} offset:{slot*16384 + m*2048}") for m in range(4)]
        ws = []
        for y in range(6):
            r = b + 16 + 4 * y
            if ssm:
                ws.append(I(f"ds_read_b128 v[{r}:{r+3}], v{vbW[h]} offset:{slot*24576 + (y&1)*6144 + (y>>1)*2048}"))
            else:
                for e in range(2):
                    ws.append(I(f"ds_read_b64_tr_b16 v[{r+2*e}:{r+2*e+1}], v{vbW[y]} offset:{slot*24576 + h*12288 + e*1536}"))
        k = 1 if ssm else 2
        return ws[:k] + xs + ws[k:]

    def mfmas(s):
        b = vF[s % 2]
        o = []
        for y in range(6):
            w = vr(b + 16 + 4 * y, 4)
            for m in range(5):
                x = vr(b + 4 * m, 4) if m < 4 else vr(aOne, 4, 'a')
                d = vr(acc_(m, y), 4) if m < 4 else vr(vCS + 4 * y, 4)
                c = d if s else "0"
                o.append(I(f"v_mfma_f32_16x16x32_bf16 {d}, {x}, {w}, {c}" if ssm else f"v_mfma_f32_16x16x32_bf16 {d}, {w}, {x}, {c}"))
        return o

    fill = [[] for _ in range(20)]
    head = [[] for _ in range(20)]
    barw = [[] for _ in range(20)]
    for i in range(2, 10):
        if i == 2:
            fill[0] += D[2]
        else:
            fill[2 * i - 5] += D[i][:5]
            fill[2 * i - 4] += D[i][5:]

    sRO = 4
    P += I(f"v_lshlrev_b32 v{vRl}, 4, v{vL}")
    if not ssm:
        sRI = 5
        g = I(f"""
s_lshr_b32 s{sT0}, s{sL}, 3
s_and_b32 s{sT1}, s{sL}, 7
s_mul_i32 s{sT2}, s{sT0}, 3
s_add_u32 s{sT2}, s{sT2}, s{sWv}
s_mul_i32 s{sT2}, s{sT2}, {32*1280}
s_mul_i32 s{sRI}, s{sT1}, 160
s_add_u32 s{sRI}, s{sRI}, s{sT2}
s_mul_i32 s{sT2}, s{sWv}, 18
s_add_u32 s{sT2}, s{sT2}, s{sT0}
s_mul_i32 s{sT1}, s{sT1}, 96
s_add_u32 s{sT2}, s{sT2}, s{sT1}
s_mul_i32 s{sRO}, s{sT2}, 5120
s_add_u32 s{sRO}, s{sRO}, {WS_WP}
s_cmp_eq_u32 s{sWv}, 3
s_cselect_b32 s{sRI}, {OOB}, s{sRI}
s_cselect_b32 s{sRO}, {OOB}, s{sRO}
v_mul_u32_u24 v{a0}, {4*1280}, v{vQ}
v_lshl_add_u32 v{a1}, v{vC}, 1, v{a0}
v_lshl_add_u32 v{a0}, v{vC}, 3, v{a0}
v_add_u32 v{t0}, {16*1280}, v{a0}
v_add_u32 v{t1}, {16*1280}, v{a1}
s_mov_b32 s{sT0}, 0x05040100
s_mov_b32 s{sT1}, 0x07060302
""")
        P += g
        vRi = V.get(16, 2)
        vRs = [t2, t3, a2, vTag] + [vPo + k for k in range(4)]
        lds_ = []
        for j in range(8):
            lds_.append(I(f"buffer_load_dwordx2 v[{vRi+2*j}:{vRi+2*j+1}], v{a0 if j < 4 else t0}, {q4(sR)}, s{sRI} offen offset:{(j%4)*1280}"))
        for j in range(8):
            lds_.append(I(f"buffer_load_ushort v{vRs[j]}, v{a1 if j < 4 else t1}, {q4(sR)}, s{sRI} offen offset:{(j%4)*1280 + 128}"))
        fill[cfg.rel_ld] += lds_
        vRo = V.get(4, 2)
        pr, rel_st = [], []
        for nt in range(5):
            for jj in range(4):
                if nt < 4:
                    lo, hi = vRi + 4 * jj + (nt >> 1), vRi + 4 * jj + 2 + (nt >> 1)
                    pr.append(I(f"v_perm_b32 v{vRo+jj}, v{hi}, v{lo}, s{sT1 if nt & 1 else sT0}"))
                else:
                    pr.append(I(f"v_lshl_or_b32 v{vRo+jj}, v{vRs[2*jj+1]}, 16, v{vRs[2*jj]}"))
            x = I(f"buffer_store_dwordx4 v[{vRo}:{vRo+3}], v{vRl}, {q4(sWS)}, s{sRO} offen offset:{1024*(nt%4)} sc1")
            if nt == 3:
                x += I(f"s_add_u32 s{sRO}, s{sRO}, 4096")
            rel_st.append(x[0])
            pr.append(x)
        h = len(pr) // 2
        fill[cfg.rel_proc] += pr[:h]
        fill[cfg.rel_proc + 1] += pr[h:]
        rel_free = lambda: (V.put(vRi, 16), V.put(vRo, 4))
    else:
        sRI = 5
        vRc = [vTag] + [vPo + k for k in range(4)]
        g = I(f"""
s_sub_u32 s{sT0}, s{sL}, 144
s_and_b32 s{sT1}, s{sT0}, 7
s_lshr_b32 s{sT0}, s{sT0}, 3
s_mul_i32 s{sRI}, s{sT1}, {80*1280}
s_lshl_b32 s{sT2}, s{sT0}, 7
s_add_u32 s{sRI}, s{sRI}, s{sT2}
s_lshl_b32 s{sT2}, s{sT0}, 2
s_add_u32 s{sT2}, s{sT2}, s{sWv}
s_mul_i32 s{sT1}, s{sT1}, 96
s_add_u32 s{sT2}, s{sT2}, s{sT1}
s_add_u32 s{sT2}, s{sT2}, 56
s_mul_i32 s{sRO}, s{sT2}, 5120
s_add_u32 s{sRO}, s{sRO}, {WS_WP}
s_cmp_ge_u32 s{sT0}, 10
s_cselect_b32 s{sRI}, {OOB}, s{sRI}
s_cselect_b32 s{sRO}, {OOB}, s{sRO}
s_lshr_b32 s{sT0}, s{sWv}, 1
s_mul_i32 s{sT1}, s{sT0}, 40
v_lshrrev_b32 v{a0}, 3, v{vL}
v_add_u32 v{a0}, s{sT1}, v{a0}
v_and_b32 v{a1}, 7, v{vL}
s_mul_i32 s{sT0}, s{sT0}, 5120
s_and_b32 s{sT1}, s{sWv}, 1
s_mul_i32 s{sT1}, s{sT1}, 10240
s_add_u32 s{sT0}, s{sT0}, s{sT1}
s_add_u32 s{sT0}, s{sT0}, {L_CST}
""")
        for j in range(5):
            g += I(f"""
v_add_u32 v{a2}, {8*j}, v{a0}
v_mul_u32_u24 v{vRc[j]}, 1280, v{a2}
v_bfe_u32 v{a2}, v{a2}, 2, 3
v_xor_b32 v{a2}, v{a2}, v{a1}
v_lshl_add_u32 v{vRc[j]}, v{a2}, 4, v{vRc[j]}
""")
            if j % 4:
                g += I(f"v_subrev_u32 v{vRc[j]}, {1024*(j%4)}, v{vRc[j]}")
        g += I(f"""
v_lshrrev_b32 v{a0}, 1, v{vQ}
s_lshl_b32 s{sT1}, s{sWv}, 1
v_add_u32 v{a0}, s{sT1}, v{a0}
v_and_b32 v{a1}, 1, v{vQ}
v_lshlrev_b32 v{a1}, 3, v{a1}
v_add_u32 v{a1}, {L_CST}, v{a1}
v_and_b32 v{a2}, 7, v{vC}
v_xor_b32 v{a2}, v{a2}, v{a0}
v_lshl_add_u32 v{t0}, v{a2}, 4, v{a1}
v_lshl_add_u32 v{t0}, v{vC}, 9, v{t0}
v_lshrrev_b32 v{a2}, 2, v{vC}
v_xor_b32 v{a2}, v{a2}, v{a0}
v_lshl_add_u32 v{t1}, v{a2}, 4, v{a1}
v_lshl_add_u32 v{t1}, v{vC}, 7, v{t1}
""")
        P += g
        lds_ = []
        for j in range(5):
            h = I(f"s_add_u32 m0, s{sT0}, {4096*(j//4)}") if j % 4 == 0 else []
            lds_ += h + I(f"buffer_load_dwordx4 v{vRc[j]}, {q4(sR)}, s{sRI} offen offset:{1024*(j%4)} lds")
        assert cfg.rel_ld == 0 or cfg.rel_ld % 2 == 1
        head[cfg.rel_ld] += lds_
        rp = cfg.rel_proc | 1
        barw[rp] += [lds_[-1]]
        vRo = V.get(20, 2)
        pr, rel_st = [], []
        for nt in range(5):
            for part in range(2):
                r = vRo + 4 * nt + 2 * part
                pr.append(I(f"ds_read_b64 v[{r}:{r+1}], v{t0 if nt < 4 else t1} offset:{part*10240 + (nt*128 if nt < 4 else 64*128)}"))
        fill[rp] += pr
        pr = []
        for nt in range(5):
            r = vRo + 4 * nt
            x = I(f"buffer_store_dwordx4 v[{r}:{r+3}], v{vRl}, {q4(sWS)}, s{sRO} offen offset:{1024*(nt%4)} sc1")
            if nt == 3:
                x += I(f"s_add_u32 s{sRO}, s{sRO}, 4096")
            rel_st.append(x[0])
            pr.append(x)
        fill[rp + 1] += pr
        rel_free = lambda: V.put(vRo, 20)

    barw[cfg.f0_flag] += rel_st + st_store
    head[cfg.f0_flag] += I(f"""
s_lshl_b32 s{sT0}, s{sL}, 2
s_add_u32 s{sT0}, s{sT0}, {WS_F0}
v_mov_b32 v{vTag}, s{sTAG}
v_mov_b32 v{a0}, s{sT0}
v_mov_b32 v{a1}, {OOB}
v_cmp_eq_u32 vcc, 0, v0
v_cndmask_b32 v{a0}, v{a1}, v{a0}, vcc
buffer_store_dword v{vTag}, v{a0}, {q4(sWS)}, 0 offen sc1
""")
    rel_free()
    sCnt = 24
    pl = f"buffer_load_dwordx4 v[{vPo}:{vPo+3}], v{vRl}, {q4(sWS)}, s{sT2} offen sc1"
    fill[cfg.f0_poll] += [I(f"s_mov_b32 s{sT2}, {WS_F0}\n{pl}")]
    chk = f"""v_xor_b32 v{vPo}, s{sTAG}, v{vPo}
v_bitop3_b32 v{vPo}, v{vPo+1}, v{vTag}, v{vPo} bitop3:0xbe
v_bitop3_b32 v{vPo}, v{vPo+2}, v{vTag}, v{vPo} bitop3:0xbe
v_bitop3_b32 v{vPo}, v{vPo+3}, v{vTag}, v{vPo} bitop3:0xbe
v_cmp_ne_u32 vcc, 0, v{vPo}"""

    def poll_tail(lbl, load, check):
        return [Raw(f"""    s_cbranch_vccz L_{T}_{lbl}_ok
    s_mov_b32 s{sCnt}, 0
L_{T}_{lbl}_retry:
    {load}
    s_add_u32 s{sCnt}, s{sCnt}, 1
    s_waitcnt vmcnt(0)
    {check}
    s_cmp_ge_u32 s{sCnt}, {cfg.spin}
    s_cbranch_scc1 L_{T}_{lbl}_ok
    s_cbranch_vccnz L_{T}_{lbl}_retry
L_{T}_{lbl}_ok:""")]
    pc = cfg.f0_poll + 2
    head[pc] += I(chk) + poll_tail("f0", pl, chk)
    head[pc] += I(f"""
s_cmp_eq_u32 s2, 0
s_cselect_b32 s{sT0}, {WS_EPOCH}, {OOB}
v_lshlrev_b32 v{a0}, 24, v0
v_and_b32 v{a1}, 127, v0
v_lshrrev_b32 v{a2}, 3, v{a1}
v_and_b32 v{t0}, 7, v{a1}
v_lshlrev_b32 v{a2}, 7, v{a2}
v_lshl_add_u32 v{a2}, v{t0}, 3, v{a2}
s_lshl_b32 s{sT1}, s{sRB1}, 11
s_add_u32 s{sT1}, s{sT1}, {WS_STATS}
buffer_load_dwordx2 v[{vPo}:{vPo+1}], v{a2}, {q4(sWS)}, s{sT1} offen sc1
v_min_u32 v{a0}, 0x2000000, v{a0}
v_lshlrev_b32 v{a1}, 2, v{a1}
v_add_u32 v{a1}, {L_ST}, v{a1}
v_lshlrev_b32 v{a0}, 1, v{a0}
buffer_store_dword v{vTag}, v{a0}, {q4(sWS)}, s{sT0} offen sc1
""")
    fill[pc + 1] += [[], [], [], [], [], [], [], [], I(f"ds_write2_b32 v{a1}, v{vPo}, v{vPo+1} offset0:0 offset1:128")]

    sWP, sHA, sRB2, sCT2 = S.get(), S.get(), S.get(), S.get()
    P += I(f"""
s_and_b32 s{sRB2}, s2, 7
s_lshl_b32 s{sRB2}, s{sRB2}, 2
s_lshr_b32 s{sCT2}, s2, 6
s_add_u32 s{sRB2}, s{sRB2}, s{sCT2}
s_lshr_b32 s{sCT2}, s2, 3
s_and_b32 s{sCT2}, s{sCT2}, 7
s_mul_i32 s{sWP}, s{sCT2}, 96
s_add_u32 s{sWP}, s{sWP}, s{sWv}
s_mul_i32 s{sWP}, s{sWP}, 5120
s_add_u32 s{sWP}, s{sWP}, {WS_WP}
s_mul_i32 s{sHA}, s{sRB2}, 96
s_add_u32 s{sHA}, s{sHA}, s{sWv}
s_lshl_b32 s{sHA}, s{sHA}, 12
s_add_u32 s{sHA}, s{sHA}, {WS_HID}
""")
    sWo, sAo = sM0X, sM0W

    def wload(i):
        g = []
        b = 20 * (i % 12)
        h = I(f"s_add_u32 s{sWo}, s{sWP}, {i*4*5120}")
        if i == 13:
            h += I(f"s_cmp_ge_u32 s{sWv}, 2\ns_cselect_b32 s{sWo}, {OOB}, s{sWo}")
        for nt in range(5):
            x = I(f"buffer_load_dwordx4 a[{b+4*nt}:{b+4*nt+3}], v{vRl if nt < 4 else vRl2}, {q4(sWS)}, s{sWo} offen offset:{1024*(nt%4)} sc1")
            g.append((h if nt == 0 else []) + x)
        return g
    assert pc >= 15
    head[pc] += I(f"v_add_u32 v{vRl2}, 4096, v{vRl}")
    WL = [wload(i) for i in range(24)]
    wq = [x for i in range(12) for x in WL[i]]
    for s in range(pc, 20):
        fill[s] += wq[:5]
        wq = wq[5:]

    fb = vF[0]
    if not ssm:
        vB1 = V.get(12, 2)
        g = srd(sT, 26, 3456) + I(f"""
s_mul_i32 s{sT0}, s{sCT}, 384
s_and_b32 s{sT1}, s{sWv}, 1
s_mul_i32 s{sT1}, s{sT1}, 192
s_add_u32 s{sT0}, s{sT0}, s{sT1}
v_lshlrev_b32 v{t2}, 3, v{vQ}""")
        head[cfg.f0_flag + 2] += g
        for ft in range(6):
            fill[cfg.f0_flag + 2] += [I(f"buffer_load_dwordx2 v[{vB1+2*ft}:{vB1+2*ft+1}], v{t2}, {q4(sT)}, s{sT0} offen offset:{32*ft}")]
        vRS = fb
        vBf = fb + 8
        head[18] += I(f"""
s_lshr_b32 s{sT0}, s{sWv}, 1
s_lshl_b32 s{sT0}, s{sT0}, 8
s_add_u32 s{sT0}, s{sT0}, {L_ST}
v_lshl_add_u32 v{t2}, v{vC}, 2, s{sT0}""")
        for m in range(4):
            fill[19] += [I(f"ds_read2_b32 v[{vRS+2*m}:{vRS+2*m+1}], v{t2} offset0:{16*m} offset1:{128+16*m}")]
        for k in range(12):
            fill[19] += [I(f"v_lshlrev_b32 v{vBf+2*k}, 16, v{vB1+k}"), I(f"v_and_b32 v{vBf+2*k+1}, 0xffff0000, v{vB1+k}")]
    else:
        vRS, vMR = fb, fb + 16
        head[18] += I(f"""
s_lshr_b32 s{sT0}, s{sWv}, 1
s_lshl_b32 s{sT0}, s{sT0}, 8
s_add_u32 s{sT0}, s{sT0}, {L_ST}
v_lshl_add_u32 v{t2}, v{vQ}, 6, s{sT0}
s_and_b32 s{sT1}, s{sWv}, 1
s_mul_i32 s{sT1}, s{sT1}, 384
s_add_u32 s{sT1}, s{sT1}, {L_TAB}
v_lshl_add_u32 v{t3}, v{vC}, 3, s{sT1}""")
        for k in range(4):
            fill[19] += [I(f"ds_read_b128 v[{vRS+4*k}:{vRS+4*k+3}], v{t2} offset:{16*k}"),
                         I(f"ds_read_b128 v[{vMR+4*k}:{vMR+4*k+3}], v{t2} offset:{512+16*k}")]
        vCo, vLam = V.get(6, 2), V.get(6, 2)
        for n in range(3):
            fill[19] += [I(f"ds_read_b64 v[{vCo+2*n}:{vCo+2*n+1}], v{t3} offset:{14*768+128*n}"),
                         I(f"ds_read_b64 v[{vLam+2*n}:{vLam+2*n+1}], v{t3} offset:{8*768+128*n}")]

    P += [Wait([D[0][-1][-1]], lgkm0=True)] + I("s_barrier") + stamp("slab0") + reads(0)
    for s in range(20):
        if s % 2 == 1 and s < 19:
            P += [Wait([D[s // 2 + 1][-1][-1]] + barw[s], lgkm0=True)] + I("s_barrier") + stamp(f"b{s}")
        else:
            assert not barw[s]
        mf = mfmas(s)
        rd = reads(s + 1) if s < 19 else []
        body = spread(mf, rd, 0, 22)
        body = spread(body, fill[s], 1, 29)
        P += [body[0], head[s], body[1:]]
    P += stamp("p1end")
    for r in vXo[1:] + vWo + vbX + vbW:
        V.put(r)
    V.put(vF[1], 40)

    sHS = 25
    hid_st = []
    if not ssm:
        V.put(vB1, 12)
        P += I(f"""
s_lshl_b32 s{sT0}, s{sRB1}, 1
s_lshr_b32 s{sT1}, s{sWv}, 1
s_add_u32 s{sT0}, s{sT0}, s{sT1}
s_mul_i32 s{sT0}, s{sT0}, 96
s_lshl_b32 s{sT1}, s{sCT}, 1
s_add_u32 s{sT0}, s{sT0}, s{sT1}
s_and_b32 s{sT1}, s{sWv}, 1
s_add_u32 s{sT0}, s{sT0}, s{sT1}
s_lshl_b32 s{sT0}, s{sT0}, 12
s_add_u32 s{sHS}, s{sT0}, {WS_HID}
""")
        K0 = -2 * math.sqrt(2 / math.pi) * math.log2(math.e)
        vK = V.get(2, 2)
        P += I(f"v_mov_b32 v{vK}, {f32(K0*0.044715)}\nv_mov_b32 v{vK+1}, {f32(K0)}")
        tmp = [V.get(8, 2) for _ in range(2)]
        outq = [V.get(4, 2) for _ in range(2)]
        ep = []
        for j in range(3):
            for m in range(4):
                z, e = tmp
                o = outq[m & 1]
                prs = [(acc_(m, 2 * j + (k >> 1)) + 2 * (k & 1), 4 * (2 * j + (k >> 1)) + 2 * (k & 1)) for k in range(4)]
                rs = f"v[{vRS+2*m}:{vRS+2*m+1}]"
                p2 = lambda r: f"v[{r}:{r+1}]"
                for k, (a, c) in enumerate(prs):
                    ep += I(f"v_pk_fma_f32 {p2(z+2*k)}, {rs}, {p2(vCS+c)}, {p2(vBf+c)} op_sel:[1,0,0] op_sel_hi:[1,1,1] neg_lo:[1,0,0] neg_hi:[1,0,0]")
                for k, (a, c) in enumerate(prs):
                    ep += I(f"v_pk_fma_f32 {p2(a)}, {rs}, {p2(a)}, {p2(z+2*k)} op_sel:[0,0,0] op_sel_hi:[0,1,1]")
                for k, (a, c) in enumerate(prs):
                    ep += I(f"v_pk_mul_f32 {p2(z+2*k)}, {p2(a)}, {p2(a)}")
                for k, (a, c) in enumerate(prs):
                    ep += I(f"v_pk_fma_f32 {p2(z+2*k)}, {p2(z+2*k)}, {p2(vK)}, {p2(vK)} op_sel:[0,0,1] op_sel_hi:[1,0,1]")
                for k, (a, c) in enumerate(prs):
                    ep += I(f"v_pk_mul_f32 {p2(z+2*k)}, {p2(z+2*k)}, {p2(a)}")
                for k in range(8):
                    ep += I(f"v_exp_f32 v{e+k}, v{z+k}")
                for k in range(4):
                    ep += I(f"v_pk_add_f32 {p2(e+2*k)}, {p2(e+2*k)}, 1.0 op_sel_hi:[1,0]")
                for k in range(8):
                    ep += I(f"v_rcp_f32 v{e+k}, v{e+k}")
                for k, (a, c) in enumerate(prs):
                    ep += I(f"v_pk_mul_f32 {p2(a)}, {p2(a)}, {p2(e+2*k)}")
                for k, (a, c) in enumerate(prs):
                    ep += I(f"v_cvt_pk_bf16_f32 v{o+k}, v{a}, v{a+1}")
                x = I(f"buffer_store_dwordx4 v[{o}:{o+3}], v{vRl}, {q4(sWS)}, s{sHS} offen offset:{1024*m} sc1")
                hid_st += x
                ep += x
            if j < 2:
                ep += I(f"s_add_u32 s{sHS}, s{sHS}, {18*4096}")
        nw = len(wq) - 6
        P += spread(ep, wq[:nw])
        P += wq[nw:]
        wq = []
        V.put(vK, 2); [V.put(r, 8) for r in tmp]; [V.put(r, 4) for r in outq]
        V.put(vF[0], 40)
    else:
        p2 = lambda r: f"v[{r}:{r+1}]"
        ep = []
        tt = V.get(2, 2)
        for n in range(3):
            for part in range(2):
                y = 2 * n + part
                for m in range(4):
                    for h in range(2):
                        a = acc_(m, y) + 2 * h
                        ep += I(f"v_pk_mul_f32 {p2(tt)}, {p2(vMR+4*m+2*h)}, {p2(vCS+4*y)}")
                        ep += I(f"v_pk_fma_f32 {p2(a)}, {p2(vRS+4*m+2*h)}, {p2(a)}, {p2(tt)} neg_lo:[0,0,1] neg_hi:[0,0,1]")
        W = [[None] * 16 for _ in range(3)]
        spare = tt
        for n in range(3):
            co = p2(vCo + 2 * n)
            for m in range(4):
                for h in range(2):
                    re_, im_ = acc_(m, 2 * n) + 2 * h, acc_(m, 2 * n + 1) + 2 * h
                    tau = 4 * m + 2 * h
                    ep += I(f"""v_pk_mul_f32 {p2(spare)}, {co}, {p2(re_)} op_sel:[0,0] op_sel_hi:[1,0]
v_pk_mul_f32 {p2(re_)}, {co}, {p2(re_)} op_sel:[0,1] op_sel_hi:[1,1]
v_pk_fma_f32 {p2(spare)}, {co}, {p2(im_)}, {p2(spare)} op_sel:[1,0,0] op_sel_hi:[0,0,1] neg_lo:[1,0,0]
v_pk_fma_f32 {p2(re_)}, {co}, {p2(im_)}, {p2(re_)} op_sel:[1,1,0] op_sel_hi:[0,1,1] neg_lo:[1,0,0]""")
                    W[n][tau], W[n][tau + 1] = spare, re_
                    spare = im_

        def cfma(d, l, x, add, tmp_):
            return I(f"""v_pk_fma_f32 {p2(tmp_)}, {p2(l)}, {p2(x)}, {p2(add)} op_sel:[0,0,0] op_sel_hi:[0,1,1]
v_pk_fma_f32 {p2(d)}, {p2(l)}, {p2(x)}, {p2(tmp_)} op_sel:[1,1,0] op_sel_hi:[1,0,1] neg_lo:[1,0,0]""")

        def cmul(d, l, x, tmp_):
            return I(f"""v_pk_mul_f32 {p2(tmp_)}, {p2(l)}, {p2(x)} op_sel:[0,0] op_sel_hi:[0,1]
v_pk_fma_f32 {p2(d)}, {p2(l)}, {p2(x)}, {p2(tmp_)} op_sel:[1,1,0] op_sel_hi:[1,0,1] neg_lo:[1,0,0]""")
        vE = V.get(6, 2)
        vTm = V.get(2, 2)
        for n in range(3):
            ep += cfma(vE + 2 * n, vLam + 2 * n, W[n][0], W[n][1], vTm)
            for tau in range(2, 16):
                ep += cfma(vE + 2 * n, vLam + 2 * n, vE + 2 * n, W[n][tau], vTm)
        nw = 20
        P += spread(ep, wq[:nw])
        wq = wq[nw:]
        V.put(vF[0], 40)
        V.put(vCo, 6)
        vNb = V.get(18, 2)
        vWt = V.get(18, 2)
        vL16 = V.get(6, 2)
        vPx = V.get(6, 2)
        P += I(f"""
s_lshr_b32 s{sT0}, s{sWv}, 1
s_lshl_b32 s{sT0}, s{sT0}, 2
v_add_u32 v{a2}, s{sT0}, v{vQ}
v_mul_u32_u24 v{a0}, 768, v{a2}
v_add_u32 v{a0}, v{a0}, v{t3}
v_add_u32 v{a0}, {L_SEG - L_TAB}, v{a0}
""")
        for n in range(3):
            P += I(f"ds_write_b64 v{a0}, {p2(vE+2*n)} offset:{128*n}")
        for n in range(3):
            P += I(f"ds_read_b64 {p2(vL16+2*n)}, v{t3} offset:{10*768+128*n}")
        for d in range(1, 4):
            P += I(f"""
v_cmp_le_u32 vcc, {d}, v{vQ}
v_subrev_u32 v{a1}, {768*d}, v{a0}
v_add_u32 v{t0}, {15*768}, v{t3}
v_cndmask_b32 v{a1}, v{t0}, v{a1}, vcc
""")
            for n in range(3):
                P += I(f"ds_read_b64 {p2(vNb+6*(d-1)+2*n)}, v{a1} offset:{128*n}")
            if d == 3:
                for n in range(3):
                    P += I(f"ds_read_b64 {p2(vWt+2*n)}, v{t3} offset:{11*768+128*n}")
        for n in range(3):
            P += cfma(vPx + 2 * n, vL16 + 2 * n, vNb + 6 + 2 * n, vNb + 2 * n, vTm)
            P += cfma(vPx + 2 * n, vWt + 2 * n, vNb + 12 + 2 * n, vPx + 2 * n, vTm)
            P += cfma(vE + 2 * n, vL16 + 2 * n, vPx + 2 * n, vE + 2 * n, vTm)
        vTb = V.get()
        P += I(f"""
v_and_b32 v{t0}, 3, v{vC}
v_lshlrev_b32 v{t0}, 3, v{t0}
v_lshrrev_b32 v{vTb}, v{t0}, v{vTag}
v_and_b32 v{vTb}, 0xff, v{vTb}
s_sub_u32 s{sT0}, s{sCT}, 9
s_lshl_b32 s{sT0}, s{sT0}, 1
s_and_b32 s{sT1}, s{sWv}, 1
s_add_u32 s{sT0}, s{sT0}, s{sT1}
s_mul_i32 s{sT0}, s{sT0}, 384
s_add_u32 s{sT0}, s{sT0}, {WS_EG}
s_lshl_b32 s{sT1}, s{sRB1}, 1
s_lshr_b32 s{sT2}, s{sWv}, 1
s_add_u32 s{sT2}, s{sT2}, s{sT1}
s_mul_i32 s{sT2}, s{sT2}, {14*384}
s_add_u32 s{sT2}, s{sT2}, s{sT0}
v_lshlrev_b32 v{t0}, 3, v{vC}
v_mov_b32 v{t1}, {OOB}
v_cmp_eq_u32 vcc, 3, v{vQ}
v_cndmask_b32 v{t1}, v{t1}, v{t0}, vcc
v_mov_b32 v{t2}, 0xff
""")
        eg_st = []
        for n in range(3):
            P += I(f"v_bfi_b32 v{vNb+2*n}, v{t2}, v{vTb}, v{vE+2*n}\nv_mov_b32 v{vNb+2*n+1}, v{vE+2*n+1}")
            x = I(f"buffer_store_dwordx2 {p2(vNb+2*n)}, v{t1}, {q4(sWS)}, s{sT2} offen offset:{128*n} sc1")
            eg_st += x
            P += x
        P += stamp("Epub")
        for n in range(3):
            P += I(f"ds_write_b64 v{a0}, {p2(vE+2*n)} offset:{128*n}")
        vG = V.get(24, 2)
        vGa = [V.get() for _ in range(4)]
        vGt = [V.get() for _ in range(4)]
        for i in range(4):
            P += I(f"""
v_lshlrev_b32 v{a1}, 2, v{a2}
v_sub_u32 v{a1}, s{sT1}, v{a1}
v_subrev_u32 v{a1}, {1+i}, v{a1}
v_cmp_le_i32 vcc, 0, v{a1}
v_mul_u32_u24 v{a1}, {14*384}, v{a1}
v_add_u32 v{a1}, v{a1}, v{t0}
v_mov_b32 v{vGa[i]}, {OOB}
v_cndmask_b32 v{vGa[i]}, v{vGa[i]}, v{a1}, vcc
v_cndmask_b32 v{vGt[i]}, 0, v{vTb}, vcc
""")
        vL64, vLg, vLq = vWt, vWt + 6, vWt + 12
        P += I(f"""
v_mul_u32_u24 v{a1}, 768, v{a2}
v_add_u32 v{a1}, v{a1}, v{t3}
v_add_u32 v{t1}, 9, v{vQ}
v_cmp_eq_u32 vcc, 0, v{vQ}
v_cndmask_b32 v{t1}, v{t1}, v{vQ}, vcc
v_mul_u32_u24 v{t1}, 768, v{t1}
v_add_u32 v{t1}, v{t1}, v{t3}
""")
        for n in range(3):
            P += I(f"""ds_read_b64 {p2(vL64+2*n)}, v{t3} offset:{13*768+128*n}
ds_read_b64 {p2(vLg+2*n)}, v{a1} offset:{128*n}
ds_read_b64 {p2(vLq+2*n)}, v{t1} offset:{128*n}""")
        P += wq[:6]
        wq = wq[6:]
        P += [Wait(eg_st)]
        gl = "\n".join(f"buffer_load_dwordx2 {p2(vG+6*i+2*n)}, v{vGa[i]}, {q4(sWS)}, s{sT0} offen offset:{128*n} sc1" for i in range(4) for n in range(3))
        gc = f"v_xor_b32 v{a1}, v{vG}, v{vGt[0]}\n" + "\n".join(
            f"v_bitop3_b32 v{a1}, v{vG+6*i+2*n}, v{vGt[i]}, v{a1} bitop3:0xbe" for i in range(4) for n in range(3) if i + n) + \
            f"\nv_and_b32 v{a1}, 0xff, v{a1}\nv_cmp_ne_u32 vcc, 0, v{a1}"
        P += I(gl) + I(gc) + poll_tail("eg", gl.replace("\n", "\n    "), gc.replace("\n", "\n    "))
        P += stamp("Egot")
        vH = vNb
        for n in range(3):
            P += cfma(vH + 2 * n, vL64 + 2 * n, vG + 18 + 2 * n, vG + 12 + 2 * n, vTm)
            P += cfma(vH + 2 * n, vL64 + 2 * n, vH + 2 * n, vG + 6 + 2 * n, vTm)
            P += cfma(vH + 2 * n, vL64 + 2 * n, vH + 2 * n, vG + 2 * n, vTm)
            P += cmul(vH + 2 * n, vLg + 2 * n, vH + 2 * n, vTm)
        for k in range(6):
            P += I(f"v_mov_b32 v{vH+6+k}, v{vH+k}")
        for k in range(6):
            P += I(f"v_permlane32_swap_b32 v{vH+k}, v{vH+6+k}")
        for n in range(3):
            P += I(f"v_pk_add_f32 {p2(vH+2*n)}, {p2(vH+2*n)}, {p2(vH+6+2*n)}")
        for k in range(6):
            P += I(f"v_mov_b32 v{vH+6+k}, v{vH+k}")
        for k in range(6):
            P += I(f"v_permlane16_swap_b32 v{vH+k}, v{vH+6+k}")
        for n in range(3):
            P += I(f"v_pk_add_f32 {p2(vH+2*n)}, {p2(vH+2*n)}, {p2(vH+6+2*n)}")
        P += I(f"""
s_lshr_b32 s{sT0}, s{sWv}, 1
s_lshl_b32 s{sT0}, s{sT0}, 10
v_subrev_u32 v{a1}, {L_TAB - L_CST}, v{t3}
v_add_u32 v{a1}, s{sT0}, v{a1}
v_xor_b32 v{t1}, 1024, v{a1}
""")
        for n in range(3):
            P += I(f"ds_write_b64 v{a1}, {p2(vH+2*n)} offset:{128*n}")
        P += I(f"""
s_cmp_ge_u32 s{sWv}, 2
s_cselect_b32 s{sT0}, {13*768}, 0
s_cselect_b32 s{sT1}, {L_SEG - L_TAB + 3*768 - 15*768}, 0
s_add_u32 s{sT1}, s{sT1}, {15*768}
v_add_u32 v{t0}, s{sT0}, v{t3}
v_add_u32 v{t2}, s{sT1}, v{t3}
""")
        P += [Wait(lgkm0=True)] + I("s_barrier")
        for n in range(3):
            P += I(f"""ds_read_b64 {p2(vH+6+2*n)}, v{t1} offset:{128*n}
ds_read_b64 {p2(vG+2*n)}, v{t0} offset:{128*n}
ds_read_b64 {p2(vG+6+2*n)}, v{t2} offset:{128*n}""")
        for n in range(3):
            P += I(f"v_pk_add_f32 {p2(vH+2*n)}, {p2(vH+2*n)}, {p2(vH+6+2*n)}")
            P += cfma(vH + 2 * n, vG + 2 * n, vH + 2 * n, vG + 6 + 2 * n, vTm)
            P += cfma(vH + 2 * n, vLq + 2 * n, vH + 2 * n, vPx + 2 * n, vTm)
        LT, BLK = 16384, 16 * 144
        P += I(f"""
s_and_b32 s{sT0}, s{sWv}, 1
s_mul_i32 s{sT0}, s{sT0}, 16384
s_cmp_ge_u32 s{sWv}, 2
s_cselect_b32 s{sT1}, {73728 - 16384}, 0
s_add_u32 s{sT0}, s{sT0}, s{sT1}
s_add_u32 s{sT0}, s{sT0}, 16384
v_mul_u32_u24 v{a0}, 144, v{vC}
v_lshl_add_u32 v{a0}, v{vQ}, 5, v{a0}
v_add_u32 v{a0}, s{sT0}, v{a0}
v_lshrrev_b32 v{a1}, 2, v{vL}
v_mul_u32_u24 v{a1}, 144, v{a1}
v_and_b32 v{a2}, 3, v{vL}
v_lshl_add_u32 v{a1}, v{a2}, 3, v{a1}
v_add_u32 v{a1}, s{sT0}, v{a1}
s_lshl_b32 s{sT0}, s{sRB1}, 1
s_lshr_b32 s{sT1}, s{sWv}, 1
s_add_u32 s{sT0}, s{sT0}, s{sT1}
s_mul_i32 s{sT0}, s{sT0}, 96
s_lshr_b32 s{sT1}, s{sCH0}, 4
s_add_u32 s{sT0}, s{sT0}, s{sT1}
s_and_b32 s{sT1}, s{sWv}, 1
s_mul_i32 s{sT1}, s{sT1}, 3
s_add_u32 s{sT0}, s{sT0}, s{sT1}
s_add_u32 s{sT0}, s{sT0}, 56
s_lshl_b32 s{sT0}, s{sT0}, 12
s_add_u32 s{sHS}, s{sT0}, {WS_HID}
""")
        vPk = vG
        vTr = vCS
        ep = []
        pend = []
        for n in range(3):
            prev = vH + 2 * n
            blk = []
            for tau in range(16):
                blk += cfma(W[n][tau], vLam + 2 * n, prev, W[n][tau], W[n][tau])
                prev = W[n][tau]
            ep += flat(spread(blk, pend, 8, 30))
            for k in range(8):
                ep += I(f"v_cvt_pk_bf16_f32 v{vPk+k}, v{W[n][2*k]}, v{W[n][2*k+1]}")
                ep += I(f"v_cvt_pk_bf16_f32 v{vPk+8+k}, -v{W[n][2*k]+1}, -v{W[n][2*k+1]+1}")
            for part in range(2):
                for h in range(2):
                    r = vPk + 8 * part + 4 * h
                    ep += I(f"ds_write_b128 v{a0}, v[{r}:{r+3}] offset:{(2*n+part)*BLK + 16*h}")
            for tt_ in range(4):
                for part in range(2):
                    r = vTr + 4 * tt_ + 2 * part
                    ep += I(f"ds_read_b64_tr_b16 {p2(r)}, v{a1} offset:{(2*n+part)*BLK + 32*tt_}")
            pend = []
            for tt_ in range(4):
                r = vTr + 4 * tt_
                x = I(f"buffer_store_dwordx4 v[{r}:{r+3}], v{vRl}, {q4(sWS)}, s{sHS} offen offset:{1024*tt_} sc1")
                hid_st += x
                pend.append(x + (I(f"s_add_u32 s{sHS}, s{sHS}, 4096") if tt_ == 3 and n < 2 else []))
        ep += flat(pend)
        nw = max(0, len(wq) - 6)
        P += spread(ep, wq[:nw])
        P += wq[nw:]
        wq = []
        V.put(tt, 2); V.put(vE, 6); V.put(vTm, 2); V.put(vNb, 18); V.put(vWt, 18); V.put(vL16, 6); V.put(vPx, 6)
        V.put(vTb); V.put(vG, 24); [V.put(r) for r in vGa + vGt]; V.put(vLam, 6)
    P += stamp("epi")
    V.put(vA, 96); V.put(vCS, 24)
    assert all(r in V.free for r in range(19, 256)), sorted(set(range(19, 256)) - V.free)
    V.free = set(range(19, 32)) | {vL}
    P += I(f"""
s_lshl_b32 s{sT0}, s{sL}, 7
s_add_u32 s{sT0}, s{sT0}, {WS_F1}
v_lshlrev_b32 v{a0}, 2, v0
v_mov_b32 v{a1}, {OOB}
v_cmp_gt_u32 vcc, 32, v0
v_cndmask_b32 v{a0}, v{a1}, v{a0}, vcc
""")
    P += [Wait(hid_st)] + I("s_barrier")
    f1 = I(f"buffer_store_dword v{vTag}, v{a0}, {q4(sWS)}, s{sT0} offen sc1")
    P += f1
    P += stamp("f1")

    vAb, vAF, vAY = 32, 96, 176
    vAo = [V.get() for _ in range(4)]
    vFl = [V.get(), V.get()]
    vRW = [None] + [V.get() for _ in range(3)]
    P += I(f"""
s_lshr_b32 s{sT1}, s{sRB2}, 1
s_lshl_b32 s{sT1}, s{sT1}, 7
s_add_u32 s{sT1}, s{sT1}, {WS_F1}
v_min_u32 v{a1}, 8, v{vC}
v_lshl_add_u32 v{vFl[0]}, v{a1}, 11, s{sT1}
v_max_u32 v{a1}, 9, v{vC}
v_lshl_add_u32 v{vFl[1]}, v{a1}, 11, s{sT1}
""")
    for u in range(4):
        P += I(f"""
s_add_u32 s{sT0}, s{sWv}, {u}
s_and_b32 s{sT0}, s{sT0}, 3
s_lshl_b32 s{sT1}, s{sT0}, 10
v_add_u32 v{vAo[u]}, s{sT1}, v{vRl}
""")
        if u:
            P += I(f"""
s_mul_i32 s{sT1}, s{sT0}, 15360
s_add_u32 s{sT1}, s{sT1}, {(u-1)*5120}
v_add_u32 v{vRW[u]}, s{sT1}, v{vRl}
""")
    vRR = V.get()
    P += I(f"s_mul_i32 s{sT1}, s{sWv}, 15360\nv_add_u32 v{vRR}, s{sT1}, v{vRl}")

    def fpoll(k):
        return f"buffer_load_dword v{vPo+k}, v{vFl[k]}, {q4(sWS)}, 0 offen sc1", f"v_cmp_ne_u32 vcc, s{sTAG}, v{vPo+k}"
    P += [Wait(f1)]
    ld, ck = fpoll(0)
    P += I(ld) + I(ck) + poll_tail("f1a", ld, ck)
    P += stamp("f1a")

    def aload(i):
        b = vAb + 16 * (i % 4)
        h = I(f"s_add_u32 s{sAo}, s{sHA}, {i*4*4096}")
        if i == 13:
            h += I(f"s_cmp_ge_u32 s{sWv}, 2\ns_cselect_b32 s{sAo}, {OOB}, s{sAo}")
        return [(h if u == 0 else []) + I(f"buffer_load_dwordx4 v[{b+4*u}:{b+4*u+3}], v{vAo[u]}, {q4(sWS)}, s{sAo} offen sc1") for u in range(4)]
    for i in range(3):
        P += aload(i)
    fill = [[] for _ in range(24)]
    head = [[] for _ in range(24)]
    pre_ = [[] for _ in range(24)]
    for i in range(24):
        g = []
        if i + 3 < 24:
            g += aload(i + 3)
        if i >= 1 and i + 11 < 24:
            g += WL[i + 11]
        fill[i] += g
    ld, ck = fpoll(1)
    fill[9] += [I(ld)]
    pre_[11] += I(ck) + poll_tail("f1b", ld, ck)

    def accf(base, u, nt):
        return base + 20 * u + 4 * nt
    wr = [I(f"ds_write_b128 v{vRW[u]}, v[{accf(vAF,u,nt)}:{accf(vAF,u,nt)+3}] offset:{1024*nt}") for u in range(1, 4) for nt in range(5)]
    fill[14] += wr[:8]
    fill[15] += wr[8:]
    pre_[16] += [Wait(lgkm0=True)] + I("s_barrier")
    fill[16] += [I(f"ds_read_b128 v[{accf(vAF,u,nt)}:{accf(vAF,u,nt)+3}], v{vRR} offset:{(u-1)*5120 + 1024*nt}") for u in range(1, 4) for nt in range(5)]
    vXr = [vPo, vPo + 2, V.get(2, 2), V.get(2, 2)]
    ex = []
    G = lambda nt, i: accf(vAF, 0, nt) + i
    for nt in range(5):
        for i in range(4):
            ex.append(I(f"v_add_f32 v{G(nt,i)}, v{G(nt,i)}, v{accf(vAF,1,nt)+i}"))
            ex.append(I(f"v_add_f32 v{accf(vAF,2,nt)+i}, v{accf(vAF,2,nt)+i}, v{accf(vAF,3,nt)+i}"))
    for nt in range(5):
        for i in range(4):
            ex.append(I(f"v_add_f32 v{G(nt,i)}, v{G(nt,i)}, v{accf(vAF,2,nt)+i}"))
    fill[17] += ex[:30]
    fill[18] += ex[30:]
    fr = vAF + 20
    vXs, vSt2, vB2, vDk = fr, fr + 4, fr + 12, fr + 20
    vXf = fr + 28
    tq = fr + 48
    head[13] += I(f"""
s_lshl_b32 s{sT0}, s{sRB2}, 6
s_lshl_b32 s{sT1}, s{sWv}, 4
s_add_u32 s{sT0}, s{sT0}, s{sT1}
v_lshl_add_u32 v{a0}, v{vQ}, 2, s{sT0}
s_mul_i32 s{sT2}, s{sCT2}, 160
v_mul_u32_u24 v{a1}, 1280, v{a0}
v_lshl_add_u32 v{t0}, v{vC}, 3, v{a1}
v_lshl_add_u32 v{t1}, v{vC}, 1, v{a1}
v_lshrrev_b32 v{a1}, 3, v{a0}
v_and_b32 v{a2}, 7, v{a0}
v_lshlrev_b32 v{a1}, 7, v{a1}
v_lshl_add_u32 v{a1}, v{a2}, 3, v{a1}
v_add_u32 v{a1}, {WS_STATS}, v{a1}
v_lshlrev_b32 v{t2}, 3, v{vC}
v_lshlrev_b32 v{t3}, 1, v{vC}
""")
    fill[14] += [I(f"buffer_load_dwordx2 v[{vXr[i]}:{vXr[i]+1}], v{t0}, {q4(sX)}, s{sT2} offen offset:{1280*i}") for i in range(4)]
    l2 = [I(f"buffer_load_ushort v{vXs+i}, v{t1}, {q4(sX)}, s{sT2} offen offset:{1280*i+128}") for i in range(4)]
    l2 += [I(f"buffer_load_dwordx4 v[{vSt2+4*k}:{vSt2+4*k+3}], v{a1}, {q4(sWS)}, 0 offen offset:{16*k} sc1") for k in range(2)]
    l2 += [srd(sT, 30, 1280) + I(f"buffer_load_dwordx2 v[{vB2}:{vB2+1}], v{t2}, {q4(sT)}, s{sT2} offen"),
           I(f"buffer_load_ushort v{vB2+2}, v{t3}, {q4(sT)}, s{sT2} offen offset:128"),
           srd(sR, 20, 1280) + I(f"buffer_load_dwordx2 v[{vDk}:{vDk+1}], v{t2}, {q4(sR)}, s{sT2} offen"),
           I(f"buffer_load_ushort v{vDk+2}, v{t3}, {q4(sR)}, s{sT2} offen offset:128")]
    fill[19] += l2
    ex = []

    def unpack5(dst, raw2, raw1):
        return [I(f"v_lshlrev_b32 v{dst[0]}, 16, v{raw2}"), I(f"v_and_b32 v{dst[1]}, 0xffff0000, v{raw2}"),
                I(f"v_lshlrev_b32 v{dst[2]}, 16, v{raw2+1}"), I(f"v_and_b32 v{dst[3]}, 0xffff0000, v{raw2+1}"),
                I(f"v_lshlrev_b32 v{dst[4]}, 16, v{raw1}")]
    ex += unpack5([vB2 + 3 + k for k in range(5)], vB2, vB2 + 2)
    ex += unpack5([vDk + 3 + k for k in range(5)], vDk, vDk + 2)
    XF = lambda nt, i: vXf + 4 * nt + i
    for i in range(4):
        ex += unpack5([XF(nt, i) for nt in range(5)], vXr[i], vXs + i)
    for nt in range(5):
        for i in range(4):
            ex.append(I(f"v_add_f32 v{G(nt,i)}, v{G(nt,i)}, v{vB2+3+nt}"))
        for i in range(4):
            ex.append(I(f"v_mul_f32 v{tq+i}, {f32(-math.log2(math.e))}, v{G(nt,i)}"))
        for i in range(4):
            ex.append(I(f"v_exp_f32 v{tq+i}, v{tq+i}"))
        for i in range(4):
            ex.append(I(f"v_fma_f32 v{tq+4+i}, v{XF(nt,i)}, v{vSt2+2*i}, -v{vSt2+2*i+1}"))
        for i in range(4):
            ex.append(I(f"v_add_f32 v{tq+i}, 1.0, v{tq+i}"))
        for i in range(4):
            ex.append(I(f"v_rcp_f32 v{tq+i}, v{tq+i}"))
        for i in range(4):
            ex.append(I(f"v_mul_f32 v{tq+4+i}, v{tq+4+i}, v{vDk+3+nt}"))
        for i in range(4):
            ex.append(I(f"v_mul_f32 v{G(nt,i)}, v{G(nt,i)}, v{tq+i}"))
        for i in range(4):
            ex.append(I(f"v_fmac_f32 v{XF(nt,i)}, v{tq+4+i}, v{G(nt,i)}"))
    k3 = len(ex) // 3
    fill[21] += ex[:k3]
    fill[22] += ex[k3:2 * k3]
    fill[23] += ex[2 * k3:]

    for i in range(24):
        base = vAF if i < 14 else vAY
        first = i in (0, 14)
        mf = []
        for u in range(4):
            for nt in range(5):
                d = vr(accf(base, u, nt), 4)
                b = 20 * (i % 12) + 4 * nt
                mf.append(I(f"v_mfma_f32_16x16x32_bf16 {d}, v[{vAb+16*(i%4)+4*u}:{vAb+16*(i%4)+4*u+3}], a[{b}:{b+3}], {'0' if first else d}"))
        body = spread(mf, fill[i], 0, 20)
        P += [pre_[i], stamp(f"q{i}") if i in (4, 8, 11, 14, 16, 20) else [], body[0], head[i], body[1:]]
    P += stamp("p2end")
    for u in range(1, 4):
        P += I(f"v_add_u32 v{vRW[u]}, 61440, v{vRW[u]}")
    P += I(f"v_add_u32 v{vRR}, 61440, v{vRR}")
    for u in range(1, 4):
        for nt in range(5):
            P += I(f"ds_write_b128 v{vRW[u]}, v[{accf(vAY,u,nt)}:{accf(vAY,u,nt)+3}] offset:{1024*nt}")
    P += I(f"""
v_mul_u32_u24 v{a1}, 2560, v{a0}
v_lshl_add_u32 v{t0}, v{vC}, 4, v{a1}
v_lshl_add_u32 v{t1}, v{vC}, 2, v{a1}
v_add_u32 v{t2}, 5120, v{t0}
v_add_u32 v{t3}, 5120, v{t1}
s_mul_i32 s{sT2}, s{sCT2}, 320
""")
    P += [Wait(lgkm0=True)] + I("s_barrier")
    for nt in range(5):
        for u in range(1, 4):
            P += I(f"ds_read_b128 v[{accf(vAY,u,nt)}:{accf(vAY,u,nt)+3}], v{vRR} offset:{(u-1)*5120 + 1024*nt}")
    p2 = lambda r: f"v[{r}:{r+1}]"
    vO = vAb
    for nt in range(5):
        for h in range(2):
            y = lambda u: p2(accf(vAY, u, nt) + 2 * h)
            P += I(f"v_pk_add_f32 {y(0)}, {y(0)}, {y(1)}\nv_pk_add_f32 {y(2)}, {y(2)}, {y(3)}\nv_pk_add_f32 {y(0)}, {y(0)}, {y(2)}")
        for i in range(4):
            d = vO + 4 * i + nt if nt < 4 else vO + 16 + i
            P += I(f"v_fma_f32 v{d}, v{accf(vAY,0,nt)+i}, v{G(nt,i)}, v{XF(nt,i)}")
        if nt == 3:
            for i in range(4):
                P += I(f"buffer_store_dwordx4 v[{vO+4*i}:{vO+4*i+3}], v{t0 if i < 2 else t2}, {q4(sO)}, s{sT2} offen offset:{2560*(i&1)} {cfg.out_aux}")
    for i in range(4):
        P += I(f"buffer_store_dword v{vO+16+i}, v{t1 if i < 2 else t3}, {q4(sO)}, s{sT2} offen offset:{2560*(i&1)+256} {cfg.out_aux}")
    if cfg.diag:
        P += stamp("st_issued") + [Wait(vm0=True)] + stamp("end") + stamp("x")
        P += I(f"""
s_getreg_b32 s{sT0}, hwreg(HW_REG_XCC_ID)
v_writelane_b32 v{vDbg}, s{sT0}, 62
v_writelane_b32 v{vDbg}, s{sL}, 63
s_lshl_b32 s{sT0}, s2, 10
s_add_u32 s{sT0}, s{sT0}, {WS_DBG}
v_lshlrev_b32 v{a1}, 2, v0
buffer_store_dword v{vDbg}, v{a1}, {q4(sWS)}, s{sT0} offen
""")
        P += [Raw(f"; STAMPS {T} " + ",".join(names[:-1]))]
    if cfg.pad:
        P += stamp("st_issued") + [Wait(vm0=True)] + stamp("end") + [Wait(lgkm0=True)]
        P += [Raw(f"""    s_and_b32 s86, s2, {cfg.padmask}
    s_cmp_eq_u32 s86, {cfg.padval}
    s_cbranch_scc0 L_{T}_padx
    s_add_u32 s84, s84, 5000
    s_mov_b32 s88, 0
L_{T}_pad:
    s_memrealtime s[86:87]
    s_add_u32 s88, s88, 1
    s_waitcnt lgkmcnt(0)
    s_sub_u32 s86, s86, s84
    s_cmp_ge_u32 s88, 100000
    s_cbranch_scc1 L_{T}_padx
    s_cmp_lt_i32 s86, 0
    s_cbranch_scc1 L_{T}_pad
L_{T}_padx:""")]
    P += I("s_endpgm")
    return P


def generate(cfg):
    hdr = open("cdna_kernels/" + NAME + ".s.ref").read().split("; Override launch")[0]
    entry = I(f"""
s_load_dwordx16 s[4:19], s[0:1], 0
s_load_dwordx2 s[20:21], s[0:1], 64
s_load_dwordx8 s[24:31], s[0:1], 80
s_load_dwordx2 s[32:33], s[0:1], 112
s_load_dwordx2 s[34:35], s[0:1], 128
""")
    ids = f"""    s_cmp_ge_u32 s2, 256
    s_cbranch_scc1 L_exit
    s_bfe_u32 s3, s2, 0x30003
    s_lshl_b32 s22, s2, 1
    s_and_b32 s22, s22, 8
    s_add_u32 s3, s3, s22
    s_lshr_b32 s22, s2, 6
    s_lshl_b32 s22, s22, 2
    s_and_b32 s23, s2, 3
    s_add_u32 s22, s22, s23
    s_lshl_b32 s23, s22, 4
    s_add_u32 s23, s23, s3
    s_cmp_ge_u32 s22, 9
    s_cbranch_scc1 L_S_start
"""
    st = {}
    body = ids
    for ssm in (False, True):
        T = "S" if ssm else "F"
        body += f"L_{T}_start:\n" + finalize(entry + build_path(ssm, cfg), st) + f"L_{T}_end:\n"
        if not ssm:
            body += "L_exit:\n    s_endpgm\n    .p2align 6\n"
    txt = f"""{hdr}; @launch grid=(256,1,1) block=(256,1,1) lds={LDS_BYTES}
.amdgcn_target "amdgcn-amd-amdhsa--gfx950"
.text
.globl {NAME}_kernel
.p2align 8
.type {NAME}_kernel,@function
{NAME}_kernel:
{body}
.section .rodata,"a"
.p2align 6
.amdhsa_kernel {NAME}_kernel
  .amdhsa_next_free_vgpr 512
  .amdhsa_next_free_sgpr 102
  .amdhsa_accum_offset 256
  .amdhsa_group_segment_fixed_size 0
  .amdhsa_kernarg_size 136
  .amdhsa_user_sgpr_count 2
  .amdhsa_user_sgpr_kernarg_segment_ptr 1
  .amdhsa_system_sgpr_workgroup_id_x 1
  .amdhsa_float_denorm_mode_32 3
.end_amdhsa_kernel
"""
    return txt, st


if __name__ == "__main__":
    cfg = Cfg()
    out = None
    for a in sys.argv[1:]:
        if "=" in a:
            k, v = a.split("=", 1)
            cur = getattr(cfg, k)
            setattr(cfg, k, type(cur)(int(v)) if isinstance(cur, (bool, int)) else v)
        else:
            out = a
    txt, st = generate(cfg)
    open(out or "cdna_kernels/" + NAME + ".s", "w").write(txt)
    print("generated", st, "lines", txt.count("\n"))
```
